```python
import torch

def _softmax(x, axis=-1):
    return torch.softmax(x, dim=axis)
def _gelu(x):
    return torch.nn.functional.gelu(x, approximate="tanh")
def _silu(x):
    return torch.nn.functional.silu(x)
def _sigmoid(x):
    return torch.sigmoid(x)
def _layernorm(x, axis=-1, eps=1e-5):
    m = x.mean(dim=axis, keepdim=True)
    v = x.var(dim=axis, keepdim=True, unbiased=False)
    return (x - m) / torch.sqrt(v + eps)
def _scatter_add(tgt, idx, src, axis=0):
    return tgt.clone().index_add_(axis, idx, src)
def _segment_sum(src, seg, n):
    out = torch.zeros((n,) + src.shape[1:], dtype=src.dtype)
    return out.index_add_(0, seg, src)
def _pad(x, pw):
    flat = tuple(v for pair in reversed(pw) for v in pair)
    return torch.nn.functional.pad(x, flat)

kernel_name = 'interleave_layers__sliding_local_dilated__linear_kernel_hedgehog__prompt'

def setup_inputs():

    _w = (lambda a: (lambda t: t.to(torch.bfloat16) if t.is_floating_point() else t)(torch.as_tensor(a)))
    def _A_setup():
        B, S, D = 1, 2048, 640
        return {
            "x": _w((lambda *s: torch.randn(*s, dtype=torch.bfloat16) * 0.05)(B, S, D)),
            "wqkv": _w((lambda *s: torch.randn(*s, dtype=torch.bfloat16) * 0.05)(D, 3 * D)),
            "wo": _w((lambda *s: torch.randn(*s, dtype=torch.bfloat16) * 0.05)(D, D)),
        }
    _A_in = _A_setup()

    def _B_setup():
        B, S, D, H = 1, 2048, 640, 32
        Dh = D // H
        return {
            "x": _w((lambda *s: torch.randn(*s, dtype=torch.bfloat16) * 0.05)(B, S, D)),
            "wqkv": _w((lambda *s: torch.randn(*s, dtype=torch.bfloat16) * 0.4)(D, 3 * D)),
            "w_phi": _w((lambda *s: torch.randn(*s, dtype=torch.bfloat16) * 0.4)(H, Dh, Dh) * (Dh ** -0.5)),
            "wo": _w((lambda *s: torch.randn(*s, dtype=torch.bfloat16) * 0.1)(D, D)),
        }
    _B_in = _B_setup()

    return {
        "A_x": _A_in["x"],
        "A_wqkv": _A_in["wqkv"],
        "A_wo": _A_in["wo"],
        "B_x": _B_in["x"],
        "B_wqkv": _B_in["wqkv"],
        "B_w_phi": _B_in["w_phi"],
        "B_wo": _B_in["wo"],
    }

def reference(A_x, A_wqkv, A_wo, B_x, B_wqkv, B_w_phi, B_wo):
    def _A_ref(x, wqkv, wo):
        B, S, D = x.shape
        H = 32; Dh = D // H
        W, dil = 8, 2
        qkv = (lambda x, *d: x.permute(*d))((x @ wqkv).reshape(B, S, 3, H, Dh), 2, 0, 3, 1, 4)
        q, k, v = qkv[0], qkv[1], qkv[2]
        scale = Dh ** -0.5
        pos = torch.arange(S)
        off = torch.arange(W) * dil
        idx = pos[:, None] - off[None, :]
        mask = idx >= 0
        idx_c = torch.where(mask, idx, 0).reshape(-1)
        kg = k[:, :, idx_c, :].reshape(B, H, S, W, Dh)
        vg = v[:, :, idx_c, :].reshape(B, H, S, W, Dh)
        logits = torch.einsum("bhsd,bhswd->bhsw", q, kg) * scale
        logits = torch.where(mask[None, None, :, :], logits, -1e9)
        attn = _softmax(logits, axis=-1)
        o = torch.einsum("bhsw,bhswd->bhsd", attn, vg)
        return (lambda x, *d: x.permute(*d))(o, 0, 2, 1, 3).reshape(B, S, D) @ wo

    def _B_ref(x, wqkv, w_phi, wo):
        B, S, D = x.shape
        H = 32; Dh = D // H
        qkv = (lambda x, *d: x.permute(*d))((x @ wqkv).reshape(B, S, 3, H, Dh), 2, 0, 3, 1, 4)
        q, k, v = qkv[0], qkv[1], qkv[2]
        pq = torch.einsum("bhsd,hdf->bhsf", q, w_phi)
        pk = torch.einsum("bhsd,hdf->bhsf", k, w_phi)
        phi_q = torch.concatenate([_softmax(pq, axis=-1), _softmax(-pq, axis=-1)], axis=-1)
        phi_k = torch.concatenate([_softmax(pk, axis=-1), _softmax(-pk, axis=-1)], axis=-1)
        kv = torch.einsum("bhsf,bhsd->bhfd", phi_k, v)
        z  = torch.einsum("bhsf->bhf", phi_k)
        num = torch.einsum("bhqf,bhfd->bhqd", phi_q, kv)
        den = torch.einsum("bhqf,bhf->bhq", phi_q, z)[..., None] + 1e-6
        o = num / den
        return (lambda x, *d: x.permute(*d))(o, 0, 2, 1, 3).reshape(B, S, D) @ wo

    x = A_x
    x = x + _A_ref(_layernorm(x, axis=-1), A_wqkv, A_wo)
    x = x + _B_ref(_layernorm(x, axis=-1), B_wqkv, B_w_phi, B_wo)
    x = x + _A_ref(_layernorm(x, axis=-1), A_wqkv, A_wo)
    x = x + _B_ref(_layernorm(x, axis=-1), B_wqkv, B_w_phi, B_wo)
    return x
```

```python
import re

TRANS = ("v_exp_f32", "v_log_f32", "v_rcp_f32", "v_rsq_f32", "v_sqrt_f32", "v_sin_f32", "v_cos_f32")

def regs_of(tok):
    tok = tok.strip()
    neg = tok.startswith("-")
    if neg: tok = tok[1:]
    if tok.startswith("abs(") or tok.startswith("|"):
        tok = tok.strip("|")
        tok = tok[4:-1] if tok.startswith("abs(") else tok
    m = re.fullmatch(r"([vas])(\d+)", tok)
    if m: return [(m.group(1), int(m.group(2)))]
    m = re.fullmatch(r"([vas])\[(\d+):(\d+)\]", tok)
    if m: return [(m.group(1), i) for i in range(int(m.group(2)), int(m.group(3)) + 1)]
    if tok in ("vcc", "vcc_lo", "vcc_hi"): return [("x", "vcc")]
    if tok in ("exec", "exec_lo", "exec_hi"): return [("x", "exec")]
    if tok == "m0": return [("x", "m0")]
    return []

def split_ops(s):
    ops, depth, cur = [], 0, ""
    for ch in s:
        if ch in "[(": depth += 1
        if ch in "])": depth -= 1
        if ch == "," and depth == 0:
            ops.append(cur.strip()); cur = ""
        else: cur += ch
    if cur.strip(): ops.append(cur.strip())
    return ops

class Ins:
    __slots__ = ("text", "op", "kind", "dst", "src", "srcc", "passes", "wide_store", "trans", "perm", "lds_dma", "states", "ab", "rdlane")
    def __init__(self, text):
        self.text = text
        t = text.split(";")[0].strip()
        parts = t.split(None, 1)
        op = parts[0]; rest = parts[1] if len(parts) > 1 else ""
        self.op = op
        ops = split_ops(rest)
        mods = ""
        if ops:
            last = ops[-1].split(None, 1)
            ops[-1] = last[0]; mods = last[1] if len(last) > 1 else ""
        R = [regs_of(o) for o in ops]
        flat = lambda l: [x for y in l for x in y]
        self.dst, self.src, self.srcc, self.ab = [], [], [], []
        self.passes = 0; self.wide_store = False; self.trans = False; self.perm = False; self.lds_dma = False; self.rdlane = False
        self.states = 1
        if op.startswith("v_mfma"):
            self.kind = "mfma"; self.dst = R[0]; self.ab = R[1] + R[2]; self.srcc = R[3]; self.src = self.ab + self.srcc
            self.passes = 8 if "32x32x16" in op else 4
            assert "16x16x32_bf16" in op or "32x32x16_bf16" in op, op
        elif op.startswith("v_"):
            self.kind = "valu"
            base = op.replace("_e32", "").replace("_e64", "")
            if base.startswith("v_cmp"):
                self.dst = R[0]; self.src = flat(R[1:])
            elif "permlane" in base and "swap" in base:
                self.dst = R[0] + R[1]; self.src = R[0] + R[1]; self.perm = True
            elif base in ("v_readfirstlane_b32", "v_readlane_b32"):
                self.dst = R[0]; self.src = flat(R[1:]); self.rdlane = True
            elif base in ("v_add_co_u32", "v_sub_co_u32", "v_addc_co_u32"):
                self.dst = R[0] + R[1]; self.src = flat(R[2:])
            else:
                self.dst = R[0]; self.src = flat(R[1:])
                if base.startswith("v_fmac") or base.startswith("v_dot2c") or base.startswith("v_pk_fmac"): self.src = self.src + R[0]
                if base == "v_cndmask_b32" and len(ops) == 3: self.src = self.src + [("x", "vcc")]
                if "dpp" in base or "row_" in mods or "quad_perm" in mods: self.perm = True
            self.trans = base in TRANS
        elif op.startswith("buffer_load") or op.startswith("global_load"):
            self.kind = "vmem"
            if re.search(r"\blds\b", mods) or "_lds_" in op:
                self.lds_dma = True; self.src = flat(R) + [("x", "m0")]
            else:
                self.dst = R[0]; self.src = flat(R[1:])
                if "d16" in op: self.src = self.src + R[0]
        elif op.startswith("buffer_store") or op.startswith("global_store"):
            self.kind = "vmem"; self.src = flat(R)
            self.wide_store = op.endswith("x4") or op.endswith("x3")
            if self.wide_store: self.srcc = R[0] if op.startswith("buffer") else R[1]
        elif op.startswith("buffer_atomic") or op.startswith("global_atomic"):
            self.kind = "vmem"; self.src = flat(R)
            if "sc0" in mods: self.dst = R[0]
        elif op.startswith("buffer_") :
            self.kind = "vmem"
        elif op.startswith("ds_read") or op.startswith("ds_bpermute") or op.startswith("ds_swizzle"):
            self.kind = "ds"; self.dst = R[0]; self.src = flat(R[1:])
        elif op.startswith("ds_"):
            self.kind = "ds"; self.src = flat(R)
        elif op == "s_nop":
            self.kind = "salu"; self.states = int(ops[0], 0) + 1
        elif op.startswith("s_"):
            self.kind = "salu"
            if op.startswith("s_cmp") or op.startswith("s_cbranch") or op in ("s_branch", "s_barrier", "s_waitcnt", "s_endpgm", "s_sleep", "s_setprio", "s_setpc_b64"):
                self.src = flat(R)
            else:
                self.dst = R[0] if R else []; self.src = flat(R[1:])
                if "saveexec" in op: self.dst = self.dst + [("x", "exec")]
        else:
            raise ValueError("unknown instr: " + text)

def need(prev, cur):
    n = 0
    pd = set(prev.dst)
    cs, cd = set(cur.src), set(cur.dst)
    isvec = lambda r: r[0] in "va"
    if prev.kind == "valu":
        pv = {r for r in pd if isvec(r)}
        ps = {r for r in pd if r[0] == "s" or r == ("x", "vcc")}
        if cur.kind == "mfma" and pv & cs: n = max(n, 2)
        if cur.kind == "valu":
            if cur.perm and pv & cs: n = max(n, 2)
            if cur.rdlane and pv & cs: n = max(n, 1)
            if prev.trans and pv & (cs | cd): n = max(n, 1)
            if ps & cs: n = max(n, 4 if cur.rdlane else 2)
        if cur.kind == "vmem" and ps & cs: n = max(n, 5)
        if cur.kind == "salu" and ps & cs: n = max(n, 1)
        if ("x", "exec") in pd: n = max(n, 5)
    if prev.kind == "mfma":
        p = prev.passes
        big = {4: 8, 8: 12}[p]
        if cur.kind == "mfma":
            if pd & set(cur.ab): n = max(n, big)
            if pd & set(cur.srcc):
                if not (cur.srcc == prev.dst and cur.passes == p): n = max(n, {4: 6, 8: 10}[p])
            elif pd & cd: n = max(n, big)
        elif cur.kind in ("valu", "vmem", "ds"):
            if pd & (cs | cd): n = max(n, big)
            if cur.kind == "valu" and set(prev.srcc) & cd: n = max(n, {4: 3, 8: 7}[p])
    if prev.kind == "vmem" and prev.wide_store:
        if set(prev.srcc) & cd: n = max(n, 2)
    if prev.kind == "salu" and ("x", "m0") in pd and cur.lds_dma: n = max(n, 1)
    return n

class Asm:
    def __init__(self):
        self.lines = []
        self.hist = []
        self.at_branch = {}
        self.vm = []
        self.uid = 0
        self.nnop = 0
    def raw(self, s): self.lines.append(s)
    def comment(self, s): self.lines.append("  ; " + s)
    def _age(self, k):
        self.hist = [(i, a + k) for i, a in self.hist if a + k < 24]
    def __call__(self, text, tag=None):
        ins = Ins(text)
        req = 0
        for p, age in self.hist:
            r = need(p, ins) - age
            if r > req: req = r
        while req > 0:
            k = min(req, 16)
            self.lines.append(f"  s_nop {k-1}"); self._age(k); req -= k; self.nnop += 1
        self.lines.append("  " + text)
        self._age(ins.states)
        self.hist.append((ins, 0))
        if ins.kind == "vmem" and not ins.op.startswith("buffer_inv") and not ins.op.startswith("buffer_wbl2"):
            self.vm.append(tag)
        if ins.op.startswith("s_cbranch") or ins.op == "s_branch":
            lab = text.split()[1]
            self.at_branch.setdefault(lab, []).append(list(self.hist))
            if ins.op == "s_branch": self.hist = []
        if ins.op == "s_endpgm": self.hist = []
        return ins
    def label(self, name):
        self.lines.append(name + ":")
        for h in self.at_branch.pop(name, []):
            self.hist = self.hist + h
    def newlabel(self, base="L"):
        self.uid += 1
        return f"{base}_{self.uid}"
    def vm_reset(self): self.vm = []
    def vm_count_after(self, tag):
        idx = max(i for i, t in enumerate(self.vm) if t == tag)
        return len(self.vm) - 1 - idx
    def wait_vm(self, tag, lgkm=None):
        n = min(self.vm_count_after(tag), 63)
        s = f"s_waitcnt vmcnt({n})"
        if lgkm is not None: s += f" lgkmcnt({lgkm})"
        self(s)
    def text(self): return "\n".join(self.lines) + "\n"

def vr(b, n=1, k="v"):
    return f"{k}{b}" if n == 1 else f"{k}[{b}:{b+n-1}]"
def ar(b, n=1): return vr(b, n, "a")
def sr(b, n=1): return vr(b, n, "s")
```

```python
import sys, math, struct
from asmlib import *

NAME = "interleave_layers__sliding_local_dilated__linear_kernel_hedgehog__prompt"
WQ_OFF = 0; WQ_TILE = 163840
WO_OFF = 32 * WQ_TILE; WO_L = 819200; WO_CG = 102400
XF_OFF = 7 << 20; XF_SZ = 2621440
OF_OFF = XF_OFF + 4 * XF_SZ
ST_OFF = OF_OFF + 4 * XF_SZ; ST_SZ = 131072
KVP_OFF = ST_OFF + 4 * ST_SZ; KVP_STR = 7168; KVP_SZ = 256 * KVP_STR
PQ_OFF = KVP_OFF + 2 * KVP_SZ; PQ_SZ = 16 * 128 * 5 * 1024
WS_USED = PQ_OFF + PQ_SZ
OOB = 0x70000000
KSTEP = 7680
NM_OFF = 161792; RS_OFF = NM_OFF + 640
LDS_Q = 163840
def f2u(x): return struct.unpack("<I", struct.pack("<f", x))[0]
LOG2E = 1.4426950408889634
ONES = 0x3F803F80
MF = "v_mfma_f32_16x16x32_bf16"

SW, SRG, SJ = 12, 13, 14
P_X, P_ST, P_O, P_WQ, P_XD, P_STD, P_KV, P_WO = 16, 17, 18, 19, 20, 21, 22, 23
VL, VL16, VM, VG = 1, 2, 3, 4

def kernel_head(a, name):
    a.raw(f".globl {name}\n.p2align 8\n.type {name},@function\n{name}:")
    a.hist = []; a.vm_reset()

def descriptor(name, vgpr=512, accum=256):
    return f""".p2align 6
.amdhsa_kernel {name}
  .amdhsa_next_free_vgpr {vgpr}
  .amdhsa_next_free_sgpr 102
  .amdhsa_accum_offset {accum}
  .amdhsa_group_segment_fixed_size 0
  .amdhsa_kernarg_size 80
  .amdhsa_user_sgpr_count 2
  .amdhsa_user_sgpr_kernarg_segment_ptr 1
  .amdhsa_system_sgpr_workgroup_id_x 1
.end_amdhsa_kernel
"""

def common_prologue(a, nwg, exit_label, aux_slot=None, aux_bytes=0, mapping=True):
    a(f"s_cmp_ge_u32 s2, {nwg}")
    a(f"s_cbranch_scc1 {exit_label}")
    a("s_load_dwordx2 s[4:5], s[0:1], 72")
    if aux_slot is not None:
        a(f"s_load_dwordx2 s[8:9], s[0:1], {aux_slot*8}")
    a("v_lshrrev_b32 v5, 6, v0")
    a(f"v_and_b32 v{VL}, 63, v0")
    a(f"v_readfirstlane_b32 s{SW}, v5")
    a(f"v_lshlrev_b32 v{VL16}, 4, v{VL}")
    a(f"v_and_b32 v{VM}, 15, v{VL}")
    a(f"v_lshrrev_b32 v{VG}, 4, v{VL}")
    a(f"s_mov_b32 s6, {WS_USED}")
    a("s_mov_b32 s7, 0x20000")
    if aux_slot is not None:
        a(f"s_mov_b32 s10, {aux_bytes}")
        a("s_mov_b32 s11, 0x20000")
    if mapping:
        a("s_and_b32 s24, s2, 7")
        a("s_lshr_b32 s25, s2, 3")
        a(f"s_and_b32 s{SJ}, s25, 15")
        a("s_lshr_b32 s25, s25, 4")
        a("s_lshl_b32 s24, s24, 1")
        a(f"s_add_u32 s{SRG}, s24, s25")
    a("s_waitcnt lgkmcnt(0)")
    a("s_and_b32 s5, s5, 0xffff")
    if aux_slot is not None:
        a("s_and_b32 s9, s9, 0xffff")

def onehot(a, dst, slot_v, valid_cmp_emit, tmp):
    t0, t1 = tmp, tmp + 1
    a(f"v_and_b32 v{t0}, 1, v{slot_v}")
    a(f"v_lshlrev_b32 v{t0}, 4, v{t0}")
    a(f"v_mov_b32 v{t1}, 0x3f80")
    a(f"v_lshlrev_b32 v{t0}, v{t0}, v{t1}")
    valid_cmp_emit()
    a(f"v_cndmask_b32 v{t0}, 0, v{t0}, vcc")
    a(f"v_lshrrev_b32 v{t1}, 1, v{slot_v}")
    for r in range(4):
        a(f"v_cmp_eq_u32 vcc, {r}, v{t1}")
        a(f"v_cndmask_b32 v{dst+r}, 0, v{t0}, vcc")

def gen_prep(a):
    name = "prep_kernel"
    kernel_head(a, name)
    common_prologue(a, 244, "prep_exit", mapping=False)
    a("s_load_dwordx4 s[28:31], s[0:1], 0")
    a("s_load_dwordx2 s[32:33], s[0:1], 16")
    a("s_load_dwordx4 s[36:39], s[0:1], 32")
    a("s_load_dwordx2 s[34:35], s[0:1], 48")
    TA, TB = 8, 12
    a(f"v_and_b32 v6, 7, v{VM}")
    a(f"v_lshrrev_b32 v7, 3, v{VM}")
    onehot(a, TA, 6, lambda: a(f"v_cmp_eq_u32 vcc, v7, v{VG}"), 16)
    a("v_add_u32 v7, 2, v7")
    onehot(a, TB, 6, lambda: a(f"v_cmp_eq_u32 vcc, v7, v{VG}"), 16)
    a("s_waitcnt lgkmcnt(0)")
    a("s_cmp_ge_u32 s2, 180")
    a("s_cbranch_scc1 prep_x")
    a("s_cmp_ge_u32 s2, 160")
    a("s_cbranch_scc1 prep_o")
    a("s_cmp_ge_u32 s2, 80")
    a("s_cselect_b32 s40, 1, 0")
    a("s_cselect_b32 s8, s36, s30")
    a("s_cselect_b32 s9, s37, s31")
    a("s_and_b32 s9, s9, 0xffff")
    a("s_mov_b32 s10, 2457600")
    a("s_mov_b32 s11, 0x20000")
    a("s_mul_i32 s41, s40, 80")
    a("s_sub_u32 s41, s2, s41")
    a("s_mul_i32 s42, s41, 205")
    a("s_lshr_b32 s42, s42, 10")
    a("s_mul_i32 s43, s42, 5")
    a("s_sub_u32 s43, s41, s43")
    a("s_lshl_b32 s44, s43, 2")
    a(f"s_add_u32 s44, s44, s{SW}")
    a("s_mul_i32 s45, s44, 122880")
    a("s_mul_i32 s46, s42, 80")
    a("s_add_u32 s45, s45, s46")
    a("s_add_u32 s46, s45, 15360")
    a(f"v_lshrrev_b32 v6, 2, v{VM}")
    a("v_lshlrev_b32 v6, 3, v6")
    a(f"v_and_b32 v7, 3, v{VM}")
    a("v_add_u32 v6, v6, v7")
    a("v_mul_u32_u24 v6, 3840, v6")
    a(f"v_lshl_add_u32 v6, v{VG}, 4, v6")
    WA = 64
    for s in range(6):
        for u in range(2):
            a(f"buffer_load_dwordx4 {vr(WA+(s*2+u)*4,4)}, v6, s[8:11], s{45+u} offen offset:{(s>>1)*1280+(s&1)*40}", tag="w")
    TQ = 20
    a("s_cmp_eq_u32 s40, 0")
    a("s_cbranch_scc1 prep_w_id")
    a("s_mov_b32 s48, s38")
    a("s_and_b32 s49, s39, 0xffff")
    a("s_mov_b32 s50, 25600")
    a("s_mov_b32 s51, 0x20000")
    a("s_mul_i32 s52, s42, 1600")
    a("s_add_u32 s53, s52, 800")
    a(f"v_mul_u32_u24 v16, 320, v{VG}")
    a(f"v_lshl_add_u32 v16, v{VM}, 1, v16")
    a(f"v_mov_b32 v17, {OOB}")
    a(f"v_cmp_ge_u32 vcc, 2, v{VG}")
    a("v_cndmask_b32 v36, v17, v16, vcc")
    a(f"v_cmp_ge_u32 vcc, 1, v{VG}")
    a("v_cndmask_b32 v37, v17, v16, vcc")
    a(f"v_cmp_gt_u32 vcc, 4, v{VM}")
    a("v_cndmask_b32 v38, v17, v36, vcc")
    a("v_cndmask_b32 v39, v17, v37, vcc")
    for hh in range(2):
        for p in range(2):
            for s in range(8):
                a(f"buffer_load_ushort v{(192 if s & 1 else TQ)+(hh*2+p)*4+(s>>1)}, v{36+p*2+(s>>2)}, s[48:51], s{52+hh} offen offset:{s*40+p*32}")
    a(f"v_lshrrev_b32 v40, 2, v{VM}")
    a("v_lshlrev_b32 v40, 10, v40")
    a(f"v_and_b32 v41, 3, v{VM}")
    a("v_lshl_add_u32 v40, v41, 4, v40")
    a("v_lshlrev_b32 v41, 4, v41")
    a("v_add_u32 v41, 4096, v41")
    a("v_mov_b32 v42, 64")
    a("v_mov_b32 v43, 64")
    a("s_waitcnt vmcnt(0)")
    for r in range(16): a(f"v_lshl_or_b32 v{TQ+r}, v{192+r}, 16, v{TQ+r}")
    a("s_branch prep_w_go")
    a.label("prep_w_id")
    for hh in range(2):
        for r in range(4):
            a(f"v_mov_b32 v{TQ+hh*8+r}, v{TA+r}")
            a(f"v_mov_b32 v{TQ+hh*8+4+r}, v{TB+r}")
    for p, (b, mu) in enumerate(((40, 42), (41, 43))):
        a(f"v_add_u32 v16, {16*p}, v{VM}")
        a("v_mul_u32_u24 v17, 13, v16")
        a("v_lshrrev_b32 v17, 6, v17")
        a("v_mul_u32_u24 v18, 5, v17")
        a("v_sub_u32 v18, v16, v18")
        a("v_lshlrev_b32 v17, 6, v17")
        a("v_lshl_add_u32 v16, v18, 4, v17")
        a("v_add_u32 v17, 4096, v17")
        a("v_cmp_gt_u32 vcc, 4, v18")
        a(f"v_cndmask_b32 v{b}, v17, v16, vcc")
        a("v_mov_b32 v16, 1024")
        a(f"v_cndmask_b32 v{mu}, 16, v16, vcc")
    a.label("prep_w_go")
    a(f"v_mov_b32 v17, {OOB}")
    a(f"v_cmp_gt_u32 vcc, 4, v{VM}")
    a("v_cndmask_b32 v41, v17, v41, vcc")
    a(f"v_lshlrev_b32 v44, 4, v{VM}")
    a("v_add_u32 v45, 7168, v44")
    a("v_cndmask_b32 v45, v17, v45, vcc")
    a("v_add_u32 v44, 5120, v44")
    a(f"v_lshlrev_b32 v46, 8, v{VG}")
    a(f"v_lshlrev_b32 v47, 7, v{VG}")
    a("s_lshl_b32 s54, s40, 4")
    a("s_add_u32 s54, s54, s42")
    a(f"s_mul_i32 s54, s54, {WQ_TILE}")
    a(f"s_mul_i32 s55, s44, {KSTEP}")
    a("s_add_u32 s55, s55, s54")
    a(f"s_mov_b32 s56, {ONES}")
    a(f"s_lshl_b32 s57, s{SW}, 2")
    a(f"v_add_u32 v48, s57, v{VG}")
    a("v_mul_u32_u24 v48, 768, v48")
    a(f"v_lshl_add_u32 v48, v{VM}, 2, v48")
    a("s_waitcnt vmcnt(0)")
    D = 112
    for s in range(6):
        for p in range(2):
            T = (TQ + ((s & 1) * 2 + p) * 4) if s < 4 else (TA if p == 0 else TB)
            for u in range(2):
                a(f"{MF} {vr(D+(p*2+u)*4,4)}, {vr(WA+(s*2+u)*4,4)}, {vr(T,4)}, 0")
        for p in range(2):
            PK = 128 + (s * 2 + p) * 4
            for u in range(2):
                for h in range(2):
                    a(f"v_cvt_pk_bf16_f32 v{PK+u*2+h}, v{D+(p*2+u)*4+2*h}, v{D+(p*2+u)*4+2*h+1}")
            adr = 50 + p
            if s < 4:
                a(f"v_mad_u32_u24 v{adr}, v{42+p}, {s}, v{40+p}")
                a(f"v_add_u32 v{adr}, v{adr}, v46")
            elif p == 0:
                a(f"v_add3_u32 v{adr}, v44, v46, {0}") if s == 4 else None
                if s == 5:
                    a(f"v_add_u32 v{adr}, v44, v46")
                    a(f"v_add_u32 v{adr}, 1024, v{adr}")
            else:
                a(f"v_add_u32 v{adr}, v45, v47")
                if s == 5: a(f"v_add_u32 v{adr}, 64, v{adr}")
            a(f"buffer_store_dwordx4 {vr(PK,4)}, v{adr}, s[4:7], s55 offen")
            cs = 52 + p
            a(f"v_dot2_f32_bf16 v{cs}, v{PK}, s56, 0")
            for r in range(1, 4):
                a(f"v_dot2_f32_bf16 v{cs}, v{PK+r}, s56, v{cs}")
            a("s_nop 2")
            a(f"ds_write_b32 v48, v{cs} offset:{(s*2+p)*64}")
    a("s_waitcnt lgkmcnt(0)")
    a("s_barrier")
    a(f"s_cmp_eq_u32 s{SW}, 3")
    a("s_cbranch_scc1 prep_exit")
    a("v_lshlrev_b32 v54, 2, v0")
    for i in range(16):
        a(f"ds_read_b32 v{64+i}, v54 offset:{i*768}")
    a("v_lshrrev_b32 v55, 5, v0")
    a(f"v_and_b32 v56, 1, v{VG}")
    a("v_cmp_eq_u32 vcc, 1, v56")
    a("v_cndmask_b32 v57, v40, v41, vcc")
    a("v_cndmask_b32 v58, v42, v43, vcc")
    a("v_mad_u32_u24 v57, v58, v55, v57")
    a(f"v_mov_b32 v60, {OOB}")
    a(f"v_cmp_gt_u32 s[60:61], 4, v{VM}")
    a("s_andn2_b64 s[62:63], vcc, s[60:61]")
    a("v_cndmask_b32 v58, v44, v45, vcc")
    a("v_mov_b32 v59, 1024")
    a("v_cndmask_b32 v59, v59, 64, vcc")
    a("v_subrev_u32 v61, 4, v55")
    a("v_mad_u32_u24 v58, v59, v61, v58")
    a("v_cmp_le_u32 s[60:61], 4, v55")
    a("v_cndmask_b32 v57, v57, v58, s[60:61]")
    a("v_cndmask_b32 v57, v57, v60, s[62:63]")
    a("s_and_b64 s[60:61], s[60:61], vcc")
    a("v_mov_b32 v59, 256")
    a("v_mov_b32 v58, 128")
    a("v_cndmask_b32 v59, v59, v58, s[60:61]")
    a("s_lshr_b32 s58, s43, 1")
    a("v_mad_u32_u24 v62, v59, s58, v57")
    a("s_and_b32 s59, s43, 1")
    a("s_lshl_b32 s59, s59, 3")
    a(f"s_add_u32 s59, s59, {20*KSTEP}")
    a("s_add_u32 s59, s59, s54")
    a("s_waitcnt lgkmcnt(0)")
    for i in range(1, 16):
        a(f"v_add_f32 v64, v64, v{64+i}")
    a("v_cvt_pk_bf16_f32 v66, v64, v64")
    a("v_and_b32 v67, 0xffff0000, v66")
    a("v_sub_f32 v64, v64, v67")
    a("v_cvt_pk_bf16_f32 v68, v64, v64")
    a("v_and_b32 v67, 0xffff0000, v68")
    a("v_sub_f32 v64, v64, v67")
    a("v_cvt_pk_bf16_f32 v71, v64, 0")
    a("v_and_b32 v66, 0xffff, v66")
    a("v_or_b32 v70, v66, v67")
    a("buffer_store_dwordx2 v[70:71], v62, s[4:7], s59 offen")
    a("s_cmp_eq_u32 s43, 4")
    a("s_cbranch_scc0 prep_exit")
    for r in range(4): a(f"v_mov_b32 v{72+r}, 0")
    a("buffer_store_dwordx2 v[72:73], v62, s[4:7], s59 offen offset:8")
    a("v_add_u32 v62, v62, v59")
    a("buffer_store_dwordx4 v[72:75], v62, s[4:7], s59 offen")
    a("s_endpgm")
    a.label("prep_o")
    a("s_sub_u32 s40, s2, 160")
    a("s_lshl_b32 s40, s40, 2")
    a(f"s_add_u32 s40, s40, s{SW}")
    a("s_cmp_ge_u32 s40, 40")
    a("s_cselect_b32 s41, 1, 0")
    a("s_cselect_b32 s8, s34, s32")
    a("s_cselect_b32 s9, s35, s33")
    a("s_and_b32 s9, s9, 0xffff")
    a("s_mov_b32 s10, 819200")
    a("s_mov_b32 s11, 0x20000")
    a("s_mul_i32 s42, s41, 40")
    a("s_sub_u32 s42, s40, s42")
    a("s_and_b32 s43, s42, 1")
    a("s_lshr_b32 s42, s42, 1")
    a(f"v_lshrrev_b32 v6, 2, v{VM}")
    a("v_mul_u32_u24 v6, 40, v6")
    a(f"v_and_b32 v7, 3, v{VM}")
    a("v_add3_u32 v6, v6, v7, 16")
    a("s_mul_i32 s44, s42, 40")
    a("s_sub_u32 s45, s42, 16")
    a("s_mul_i32 s45, s45, 160")
    a("s_cmp_lt_u32 s42, 16")
    a("s_cselect_b32 s44, s44, s45")
    a("s_cselect_b64 vcc, -1, 0")
    a(f"v_cndmask_b32 v6, v6, v{VM}, vcc")
    a("v_mul_u32_u24 v6, 1280, v6")
    a(f"v_lshl_add_u32 v6, v{VG}, 4, v6")
    a("s_mul_i32 s44, s44, 1280")
    a("s_mul_i32 s45, s43, 640")
    a("s_add_u32 s44, s44, s45")
    a("s_add_u32 s45, s44, 25600")
    for n in range(10):
        for u in range(2):
            a(f"buffer_load_dwordx4 {vr(64+(n*2+u)*4,4)}, v6, s[8:11], s{44+u} offen offset:{n*64}", tag=("o", n))
    a(f"v_bfe_u32 v16, v{VM}, 2, 1")
    a("v_lshlrev_b32 v16, 10, v16")
    a(f"v_lshrrev_b32 v17, 3, v{VM}")
    a("v_lshl_add_u32 v16, v17, 6, v16")
    a("v_lshl_add_u32 v16, v7, 4, v16")
    a(f"v_lshl_add_u32 v16, v{VG}, 8, v16")
    a(f"s_mul_i32 s46, s41, {WO_L}")
    a("s_mul_i32 s47, s42, 5120")
    a("s_add_u32 s46, s46, s47")
    a(f"s_mul_i32 s47, s43, {4*WO_CG}")
    a("s_add_u32 s46, s46, s47")
    a(f"s_add_u32 s46, s46, {WO_OFF}")
    for q in range(1, 4):
        a(f"s_add_u32 s{46+q}, s46, {q*WO_CG}")
    for q in range(4):
        a(f"s_add_u32 s{50+q}, s{46+q}, 4096")
    for n in range(10):
        a.wait_vm(("o", n))
        Dn = 160 + (n & 1) * 16
        for p in range(2):
            for u in range(2):
                a(f"{MF} {vr(Dn+(p*2+u)*4,4)}, {vr(64+(n*2+u)*4,4)}, {vr(TA if p==0 else TB,4)}, 0")
        q5, c5 = n // 5, n % 5
        for p in range(2):
            PK = 192 + ((n & 1) * 2 + p) * 4
            for u in range(2):
                for h in range(2):
                    a(f"v_cvt_pk_bf16_f32 v{PK+u*2+h}, v{Dn+(p*2+u)*4+2*h}, v{Dn+(p*2+u)*4+2*h+1}")
            if c5 == 2:
                a(f"buffer_store_dwordx4 {vr(PK,4)}, v{VL16}, s[4:7], s{50+2*q5+p} offen")
            else:
                cg = 2 * q5 + (1 if c5 > 2 else 0); pair = c5 if c5 < 2 else c5 - 3
                a(f"buffer_store_dwordx4 {vr(PK,4)}, v16, s[4:7], s{46+cg} offen offset:{pair*2048+p*128}")
    a("s_endpgm")
    a.label("prep_x")
    a.vm_reset()
    a("s_mov_b32 s8, s28")
    a("s_and_b32 s9, s29, 0xffff")
    a("s_mov_b32 s10, 2621440")
    a("s_mov_b32 s11, 0x20000")
    a("s_sub_u32 s40, s2, 180")
    a("s_lshl_b32 s40, s40, 2")
    a(f"s_add_u32 s40, s40, s{SW}")
    a("s_lshr_b32 s41, s40, 1")
    a("s_and_b32 s42, s40, 1")
    a("s_mul_i32 s43, s41, 20480")
    a("s_mul_i32 s44, s42, 640")
    a("s_add_u32 s44, s44, s43")
    a(f"v_mul_u32_u24 v6, 1280, v{VM}")
    a(f"v_lshl_add_u32 v6, v{VG}, 4, v6")
    for n in range(10):
        a(f"buffer_load_dwordx4 {vr(64+n*4,4)}, v6, s[8:11], s44 offen offset:{n*64}", tag=("x", n))
    a("s_mul_i32 s45, s42, 10240")
    a("s_add_u32 s45, s45, s43")
    a(f"s_add_u32 s45, s45, {XF_OFF}")
    a("s_add_u32 s46, s45, 4096")
    a("s_add_u32 s47, s45, 8192")
    a(f"s_mov_b32 s56, {ONES}")
    a("v_mov_b32 v16, 0")
    a("v_mov_b32 v17, 0")
    for n in range(10):
        a.wait_vm(("x", n))
        a(f"buffer_store_dwordx4 {vr(64+n*4,4)}, v{VL16}, s[4:7], s{45+n//4} offen offset:{(n%4)*1024}")
        for r in range(4):
            a(f"v_dot2_f32_bf16 v{16+(r&1)}, v{64+n*4+r}, s56, v{16+(r&1)}")
    a("s_nop 2")
    a("v_add_f32 v16, v16, v17")
    xreduce_add(a, 16, 17)
    a(f"v_mul_f32 v18, {f2u(-1.0/320)}, v16")
    a("v_mov_b32 v20, 0")
    a("v_mov_b32 v21, 0")
    for i in range(40):
        t = 24 + (i & 3) * 2
        a(f"v_lshlrev_b32 v{t}, 16, v{64+i}")
        a(f"v_and_b32 v{t+1}, 0xffff0000, v{64+i}")
        a(f"v_pk_add_f32 {vr(t,2)}, {vr(t,2)}, v[18:19] op_sel_hi:[1,0]")
        a(f"v_pk_fma_f32 v[20:21], {vr(t,2)}, {vr(t,2)}, v[20:21]")
    a("v_add_f32 v20, v20, v21")
    xreduce_add(a, 20, 21)
    a("v_mul_f32 v22, 0.25, v16") if False else a(f"v_mul_f32 v22, {f2u(0.25)}, v16")
    a(f"v_mul_f32 v23, {f2u(0.25)}, v20")
    a(f"v_lshlrev_b32 v6, 6, v{VM}")
    a(f"v_lshl_add_u32 v6, v{VG}, 3, v6")
    a("s_lshl_b32 s48, s41, 10")
    a("s_lshl_b32 s49, s42, 5")
    a("s_add_u32 s48, s48, s49")
    a(f"s_add_u32 s48, s48, {ST_OFF}")
    a("buffer_store_dwordx2 v[22:23], v6, s[4:7], s48 offen")
    a.label("prep_exit")
    a("s_endpgm")
    return name

def xreduce(a, v, t, op):
    a(f"v_mov_b32 v{t}, v{v}")
    a(f"v_permlane32_swap_b32 v{v}, v{t}")
    a(f"{op} v{v}, v{v}, v{t}")
    a(f"v_mov_b32 v{t}, v{v}")
    a(f"v_permlane16_swap_b32 v{v}, v{t}")
    a(f"{op} v{v}, v{v}, v{t}")
def xreduce_add(a, v, t): xreduce(a, v, t, "v_add_f32")

ACC = 64; HACC = 128; WF = 140; HWF = 204; STR = 216
VL16B, VLA, VLX, VH01, VH2 = 5, 6, 7, 8, 9
XS = 232
RSM = 244
RS4 = 44
def acc(blk, rb): return ACC + (blk * 2 + rb) * 4

def qkv_main(a, isA, pre_work):
    D = 5
    a(f"s_mul_i32 s26, s{SJ}, {WQ_TILE}")
    a(f"s_add_u32 s26, s26, s{P_WQ}")
    a(f"s_lshl_b32 s27, s{SW}, 12")
    a("s_add_u32 s28, s26, s27")
    a(f"s_lshl_b32 s29, s{SRG}, 3")
    a(f"s_lshl_b32 s30, s{SW}, 1")
    a("s_add_u32 s30, s30, s29")
    a("s_mul_i32 s30, s30, 20480")
    a(f"s_add_u32 s30, s30, s{P_X}")
    a(f"v_add_u32 v{VL16B}, 20480, v{VL16}")
    if isA:
        a("s_mul_i32 s31, s29, 20480")
        a(f"s_add_u32 s31, s31, s{P_X}")
        a("s_sub_u32 s31, s31, 20480")
        a(f"s_and_b32 s32, s{SW}, 1")
        a("s_lshl_b32 s32, s32, 10")
        a("s_add_u32 s31, s31, s32")
        a(f"s_cmp_eq_u32 s{SRG}, 0")
        a(f"s_cselect_b32 s31, {OOB}, s31")
    def issue_round(r):
        out = []
        if r < 10:
            out.append([f"s_add_u32 m0, s27, {r*15360}", f"s_add_u32 s33, s28, {r*15360}",
                        (f"buffer_load_dwordx4 v{VL16}, s[4:7], s33 offen lds", ("r", r))])
            for i in range(1, 4):
                out.append([(f"buffer_load_dwordx4 v{VL16}, s[4:7], s33 offen offset:{i*1024} lds", ("r", r))])
            first = True
            for k in range(2):
                for rb in range(2):
                    pre = [f"s_add_u32 s34, s30, {r*2048}"] if first else []
                    first = False
                    out.append(pre + [(f"buffer_load_dwordx4 {ar(((2*r+k)*2+rb)*4,4)}, v{VL16B if rb else VL16}, s[4:7], s34 offen offset:{k*1024}", ("r", r))])
            if isA:
                out.append([f"s_add_u32 s35, s31, {r*2048}",
                            (f"buffer_load_dwordx4 {ar(160+r*4,4)}, v{VL16}, s[4:7], s35 offen", ("r", r))])
        elif r == 10:
            out.append(["s_lshr_b32 s36, s27, 1", "s_add_u32 m0, s36, 153600", "s_add_u32 s33, s26, s36", "s_add_u32 s33, s33, 153600",
                        (f"buffer_load_dwordx4 v{VL16}, s[4:7], s33 offen lds", ("r", r))])
            out.append([(f"buffer_load_dwordx4 v{VL16}, s[4:7], s33 offen offset:1024 lds", ("r", r))])
        return out
    def emit_group(grp):
        for x in grp:
            if isinstance(x, tuple): a(x[0], tag=x[1])
            else: a(x)
    for g in issue_round(0): emit_group(g)
    a(f"s_lshl_b32 s37, s{SRG}, 13")
    a(f"s_add_u32 s37, s37, s{P_ST}")
    a("s_sub_u32 s37, s37, 1024")
    a("v_lshlrev_b32 v10, 6, v0")
    if isA:
        a(f"v_mov_b32 v11, {OOB}")
        a("v_cmp_gt_u32 vcc, 16, v0")
        a(f"s_cmp_eq_u32 s{SRG}, 0")
        a("s_cselect_b64 vcc, vcc, 0")
        a("v_cndmask_b32 v10, v10, v11, vcc")
    else:
        a("v_max_u32 v10, 1024, v10")
    for i in range(4):
        a(f"buffer_load_dwordx4 {vr(STR+4*i,4)}, v10, s[4:7], s37 offen offset:{16*i}", tag="st")
    for r in range(1, D):
        for g in issue_round(r): emit_group(g)
    a(f"v_mov_b32 v{VLA}, v{VL16}")
    a(f"v_lshrrev_b32 v10, 2, v{VM}")
    a("v_lshlrev_b32 v10, 1, v10")
    a(f"v_and_b32 v11, 1, v{VM}")
    a("v_add_u32 v10, v10, v11")
    a(f"v_lshl_add_u32 v10, v{VG}, 3, v10")
    a("v_lshlrev_b32 v10, 4, v10")
    a(f"v_add_u32 v{VLX}, 7168, v10")
    if isA:
        a(f"s_and_b32 s38, s{SW}, 1")
        a(f"s_mul_i32 s38, s38, {KSTEP}")
        a(f"s_cmp_ge_u32 s{SW}, 2")
        a("s_cselect_b32 s39, 5, 2")
        a("s_cselect_b64 vcc, -1, 0")
        a("s_lshl_b32 s39, s39, 10")
        a("s_add_u32 s39, s39, s38")
        a(f"v_add_u32 v{VH01}, s39, v{VL16}")
        a(f"v_add_u32 v10, 4096, v{VL16}")
        a(f"v_cndmask_b32 v10, v10, v{VLX}, vcc")
        a(f"v_add_u32 v{VH2}, s38, v10")
    pre_work()
    def reads(ks):
        o = (ks % 8) * KSTEP
        st = WF + (ks & 1) * 32
        l = [f"ds_read_b128 {vr(st+b*4,4)}, v{VLA} offset:{o+b*1024}" for b in range(7)]
        l.append(f"ds_read_b128 {vr(st+28,4)}, v{VLX} offset:{o}")
        return l
    def hreads(p):
        o = (p % 4) * 15360
        return [f"ds_read_b128 {vr(HWF,4)}, v{VH01} offset:{o}", f"ds_read_b128 {vr(HWF+4,4)}, v{VH01} offset:{o+1024}",
                f"ds_read_b128 {vr(HWF+8,4)}, v{VH2} offset:{o}"]
    def stats_code():
        s = STR
        c = []
        c.append(f"v_add_f32 v10, v{s}, v{s+2}")
        for t in range(2, 8): c.append(f"v_add_f32 v10, v10, v{s+2*t}")
        c.append(f"v_add_f32 v11, v{s+1}, v{s+3}")
        for t in range(2, 8): c.append(f"v_add_f32 v11, v11, v{s+2*t+1}")
        c.append(f"v_mul_f32 v10, {f2u(1.0/640)}, v10")
        c.append(f"v_mul_f32 v12, {f2u(-80.0)}, v10")
        c.append("v_mov_b32 v13, 0")
        for t in range(8):
            c.append(f"v_add_f32 v{s+2*t}, v{s+2*t}, v12")
            c.append(f"v_fmac_f32 v13, v{s+2*t}, v{s+2*t}")
        c.append(f"v_mul_f32 v13, {f2u(1.0/80)}, v13")
        c.append("v_add_f32 v11, v11, v13")
        c.append(f"v_mul_f32 v11, {f2u(1.0/640)}, v11")
        c.append("v_cvt_pk_bf16_f32 v11, v11, v11")
        c.append("v_and_b32 v11, 0xffff0000, v11")
        c.append(f"v_add_f32 v11, {f2u(1e-5)}, v11")
        c.append("v_cvt_pk_bf16_f32 v11, v11, v11")
        c.append("v_and_b32 v11, 0xffff0000, v11")
        c.append("v_sqrt_f32 v11, v11")
        c.append("v_cvt_pk_bf16_f32 v10, -v10, -v10")
        c.append("v_cvt_pk_bf16_f32 v11, v11, v11")
        c.append("v_and_b32 v11, 0xffff0000, v11")
        c.append("v_rcp_f32 v11, v11")
        c.append("v_lshlrev_b32 v12, 2, v0")
        c.append(f"v_add_u32 v12, {NM_OFF}, v12")
        c.append("v_cmp_gt_u32 vcc, 0x90, v0")
        c.append("s_and_saveexec_b64 s[40:41], vcc")
        c.append("ds_write_b32 v12, v10")
        c.append(f"ds_write_b32 v12, v11 offset:{RS_OFF-NM_OFF}")
        c.append("s_mov_b64 exec, s[40:41]")
        return c
    def xs_reads():
        c = []
        c.append(f"s_lshl_b32 s38, s{SW}, 7")
        c.append(f"s_add_u32 s38, s38, {NM_OFF+64}")
        c.append(f"v_lshl_add_u32 v10, v{VM}, 2, s38")
        c.append(f"v_lshl_add_u32 v11, v{VG}, 4, s38")
        for rb in range(2):
            for h in range(2):
                c.append(f"ds_read2_b32 {vr(XS+rb*4+h*2,2)}, v10 offset0:{rb*16} offset1:{rb*16}")
            c.append(f"ds_read_b32 v{RSM+rb}, v10 offset:{RS_OFF-NM_OFF+rb*64}")
            c.append(f"ds_read_b128 {vr(48+rb*4,4)}, v11 offset:{RS_OFF-NM_OFF+rb*64}")
        if isA:
            c.append(f"v_lshlrev_b32 v10, 2, v{VM}")
            c.append(f"v_add_u32 v10, {NM_OFF}, v10")
            c.append(f"v_lshlrev_b32 v11, 4, v{VG}")
            c.append(f"v_add_u32 v11, {NM_OFF}, v11")
            for h in range(2):
                c.append(f"ds_read2_b32 {vr(XS+8+h*2,2)}, v10 offset0:0 offset1:0")
            c.append(f"ds_read_b32 v{RSM+2}, v10 offset:{RS_OFF-NM_OFF}")
            c.append(f"ds_read_b128 {vr(44,4)}, v11 offset:{RS_OFF-NM_OFF}")
        return c
    a.wait_vm(("r", 0))
    a("s_barrier")
    for x in reads(0): a(x)
    for ks in range(21):
        fill = []
        top_wait = None
        if ks + 1 <= 20 and (ks & 1):
            top_wait = ("r", (ks + 1) // 2)
        if top_wait: a.wait_vm(top_wait, lgkm=0); a("s_barrier")
        else: a("s_waitcnt lgkmcnt(0)")
        if ks + 1 <= 20:
            if (ks + 1) % 8 == 0:
                fill.append([f"v_add_u32 v{VLA}, 61440, v{VLA}", f"v_add_u32 v{VLX}, 61440, v{VLX}"])
            fill += [[x] for x in reads(ks + 1)]
        if isA and ks % 2 == 0 and ks < 20:
            if ks % 8 == 0 and ks > 0:
                fill.append([f"v_add_u32 v{VH01}, 61440, v{VH01}", f"v_add_u32 v{VH2}, 61440, v{VH2}"])
            fill += [[x] for x in hreads(ks // 2)]
        if isA and ks == 19:
            pass
        r = issue_round(ks // 2 + D)
        half = (len(r) + 1) // 2
        fill += r[:half] if ks % 2 == 0 else r[half:]
        if ks == 2:
            sc = stats_code()
            body, last = sc[:-5], sc[-5:]
            fill += [body[i:i+3] for i in range(0, len(body), 3)] + [last]
        if ks == 17:
            fill += [[x] for x in xs_reads()]
        if ks == 18 and isA:
            fill.append([f"s_and_b32 s38, s{SW}, 1", "s_cmp_eq_u32 s38, 1", "s_cselect_b64 s[42:43], -1, 0", f"s_mul_i32 s38, s38, {KSTEP}"])
        mf = []
        st = WF + (ks & 1) * 32
        for b in range(8):
            for rb in range(2):
                X = ar((ks * 2 + rb) * 4, 4) if ks < 20 else vr(XS + rb * 4, 4)
                C = "0" if ks == 0 else vr(acc(b, rb), 4)
                if b < 5: mf.append(f"{MF} {vr(acc(b,rb),4)}, {vr(st+b*4,4)}, {X}, {C}")
                else: mf.append(f"{MF} {vr(acc(b,rb),4)}, {X}, {vr(st+b*4,4)}, {C}")
        if isA and (ks & 1):
            p = ks // 2
            for t in range(3):
                C = "0" if p == 0 else vr(HACC + t * 4, 4)
                mf.append(f"{MF} {vr(HACC+t*4,4)}, {vr(HWF+t*4,4)}, {ar(160+p*4,4)}, {C}")
        if isA and ks == 20:
            for t in range(3):
                mf.append(f"{MF} {vr(HACC+t*4,4)}, {vr(HWF+t*4,4)}, {vr(XS+8,4)}, {vr(HACC+t*4,4)}")
        n = len(mf)
        pos = 0
        for i, m in enumerate(mf):
            a(m)
            tgt = (len(fill) * (i + 1) + n - 1) // n if i < n - 1 else len(fill)
            tgt = min(len(fill), max(tgt, 0))
            while pos < tgt:
                emit_group(fill[pos]); pos += 1
        if isA and ks == 19:
            a(f"v_subrev_u32 v{VH01}, s38, v{VH01}")
            a(f"v_subrev_u32 v{VH2}, s38, v{VH2}")
            for r_ in range(4):
                a(f"v_cndmask_b32 v{XS+8+r_}, v{XS+8+r_}, 0, s[42:43]")
            for x in hreads(10): a(x)

def scale_pack_sw(a, dst, tile, e_reg, rs):
    a(f"v_pk_mul_f32 {vr(tile,2)}, {vr(tile,2)}, {vr(rs,2)} op_sel_hi:[1,0]")
    a(f"v_pk_mul_f32 {vr(tile+2,2)}, {vr(tile+2,2)}, {vr(rs,2)} op_sel_hi:[1,0]")
    a(f"v_cvt_pk_bf16_f32 v{dst}, v{tile}, v{tile+1}")
    a(f"v_cvt_pk_bf16_f32 v{dst+1}, v{tile+2}, v{tile+3}")
    a(f"v_cvt_pk_bf16_f32 v{dst+2}, v{e_reg}, 0")

def scale_pack_n(a, dst, tile, rs4):
    a(f"v_pk_mul_f32 {vr(tile,2)}, {vr(tile,2)}, {vr(rs4,2)}")
    a(f"v_pk_mul_f32 {vr(tile+2,2)}, {vr(tile+2,2)}, {vr(rs4+2,2)}")
    a(f"v_cvt_pk_bf16_f32 v{dst}, v{tile}, v{tile+1}")
    a(f"v_cvt_pk_bf16_f32 v{dst+1}, v{tile+2}, v{tile+3}")

def o_store_setup(a):
    a(f"s_lshl_b32 s44, s{SRG}, 3")
    a(f"s_lshl_b32 s45, s{SW}, 1")
    a("s_add_u32 s44, s44, s45")
    a("s_mul_i32 s44, s44, 20480")
    a(f"s_add_u32 s44, s44, s{P_O}")
    a(f"s_lshr_b32 s46, s{SJ}, 2")
    a("s_add_u32 s46, s46, 16")
    a("s_lshl_b32 s46, s46, 10")
    a(f"s_and_b32 s47, s{SJ}, 3")
    a("s_lshl_b32 s47, s47, 8")
    a("s_add_u32 s46, s46, s47")
    a("s_add_u32 s46, s46, s44")
    a("s_add_u32 s47, s46, 20480")
    a(f"s_lshl_b32 s45, s{SJ}, 10")
    a("s_add_u32 s44, s44, s45")
    a("s_add_u32 s45, s44, 20480")
    a(f"v_lshlrev_b32 v14, 4, v{VM}")
    a(f"v_lshl_add_u32 v14, v{VG}, 2, v14")
    a("s_mov_b32 s48, -1")
    a("s_mov_b32 s49, 0")
    a("s_mov_b32 s50, 0x33333333")
    a("s_mov_b32 s51, 0x33333333")

def o_finish(a, rb, O0, O1, X0, X1, d0, d1, inv, out):
    a(f"v_rcp_f32 v{inv}, v{d0}")
    a(f"v_rcp_f32 v{inv+2}, v{d1}")
    for h, O in enumerate((O0, O1)):
        a(f"v_pk_mul_f32 {vr(O,2)}, {vr(O,2)}, {vr(inv+2*h,2)} op_sel_hi:[1,0]")
        a(f"v_pk_mul_f32 {vr(O+2,2)}, {vr(O+2,2)}, {vr(inv+2*h,2)} op_sel_hi:[1,0]")
    a(f"v_pk_mul_f32 {vr(X0+2,2)}, {vr(X0+2,2)}, {vr(inv,2)} op_sel_hi:[1,0]") if X0 != X1 else None
    if X0 != X1:
        a(f"v_pk_mul_f32 {vr(X1+2,2)}, {vr(X1+2,2)}, {vr(inv+2,2)} op_sel_hi:[1,0]")
    else:
        a(f"v_cndmask_b32 v{inv}, v{inv+2}, v{inv}, s[48:49]")
        a(f"v_pk_mul_f32 {vr(X0+2,2)}, {vr(X0+2,2)}, {vr(inv,2)} op_sel_hi:[1,0]")
    for h, O in enumerate((O0, O1)):
        a(f"v_cvt_pk_bf16_f32 v{out+2*h}, v{O}, v{O+1}")
        a(f"v_cvt_pk_bf16_f32 v{out+2*h+1}, v{O+2}, v{O+3}")
    a(f"buffer_store_dwordx4 {vr(out,4)}, v{VL16}, s[4:7], s{44+rb} offen")
    a(f"v_cvt_pk_bf16_f32 v{out+4}, v{X0+2}, v{X0+3}")
    if X0 != X1:
        a(f"v_cvt_pk_bf16_f32 v{out+5}, v{X1+2}, v{X1+3}")
        a(f"v_cndmask_b32 v{out+4}, v{out+5}, v{out+4}, s[48:49]")
    a(f"buffer_store_dword v{out+4}, v14, s[4:7], s{46+rb} offen")

BP, BC, BP0 = 16, 20, 24
def gen_qa_body(a):
    def pre():
        o_store_setup(a)
        a(f"v_lshlrev_b32 v10, 2, v{VG}")
        a(f"v_sub_u32 v10, v{VM}, v10")
        a(f"v_mov_b32 v12, {f2u(-1e30)}")
        a(f"s_or_b32 s52, s{SRG}, s{SW}")
        a("s_cmp_eq_u32 s52, 0")
        a("s_cselect_b64 s[52:53], -1, 0")
        for r in range(4):
            for base, add in ((BC, 0), (BP, 16)):
                a(f"v_add_u32 v11, {add-r}, v10")
                a("v_alignbit_b32 v11, v11, v11, 1")
                a("v_cmp_ge_u32 vcc, 7, v11")
                a(f"v_cndmask_b32 v{base+r}, v12, 0, vcc")
            a(f"v_cndmask_b32 v{BP0+r}, v{BP+r}, v12, s[52:53]")
        c = f2u(20 ** -0.5 * LOG2E)
        a(f"s_mov_b32 s54, {c}")
        a(f"s_mov_b32 s55, {c}")
    qkv_main(a, True, pre)
    QOP = 140
    KOP = 156
    VS = 180
    qop = lambda rb, h: QOP + (rb * 2 + h) * 4
    kop = lambda pos, h: KOP + (pos * 2 + h) * 4
    vs = lambda b, pos: VS + b * 6 + pos * 2
    EX = 0; HX = 8192
    a(f"s_mul_i32 s38, s{SW}, 3072")
    a(f"v_add_u32 v10, s38, v{VL16}")
    a(f"s_lshl_b32 s39, s{SW}, 12")
    a(f"v_add_u32 v11, s39, v{VL16}")
    for i in range(10): a(f"v_mov_b32 v{QOP+4*i+3}, 0")
    a(f"v_mov_b32 v28, {ONES}")
    for t in range(3):
        a(f"ds_write_b128 v10, {vr(HACC+4*t,4)} offset:{t*1024}")
    XB = 16384
    a(f"v_mov_b32 v30, v{RSM+1}")
    a(f"v_mov_b32 v32, v{RSM+2}")
    rsm = {0: RSM, 1: 30, 2: 32}
    for rb in (1, 0):
        E = acc(4, rb)
        a(f"v_pk_mul_f32 {vr(E,2)}, {vr(E,2)}, {vr(rsm[rb],2)} op_sel_hi:[1,0]")
        a(f"v_pk_mul_f32 {vr(E+2,2)}, {vr(E+2,2)}, {vr(rsm[rb],2)} op_sel_hi:[1,0]")
        for h in range(2):
            scale_pack_sw(a, kop(1 + rb, h), acc(2 + h, rb), E + 2 + h, rsm[rb])
        for b in range(3):
            scale_pack_n(a, vs(b, 1 + rb), acc(5 + b, rb), 48 + rb * 4)
        for r in range(2):
            a(f"v_cndmask_b32 v{vs(2,1+rb)+r}, v{vs(2,1+rb)+r}, v28, s[50:51]")
        if rb == 1:
            for h in range(2):
                a(f"ds_write_b128 v11, {vr(kop(2,h),4)} offset:{XB+h*1024}")
            a(f"v_lshrrev_b32 v12, 1, v11")
            a(f"v_add_u32 v12, s39, v12")
            a(f"s_lshr_b32 s38, s39, 1")
            a(f"v_subrev_u32 v12, s38, v12")
            for b in range(3):
                a(f"ds_write_b64 v12, {vr(vs(b,2),2)} offset:{XB+2048+b*512}")
        for h in range(2):
            scale_pack_sw(a, qop(rb, h), acc(h, rb), E + h, rsm[rb])
    def attention(rb, bprev):
        S = 64
        for h in range(2):
            a(f"{MF} {vr(S+h*8,4)}, {vr(kop(rb,h),4)}, {vr(qop(rb,h),4)}, 0")
            a(f"{MF} {vr(S+h*8+4,4)}, {vr(kop(rb+1,h),4)}, {vr(qop(rb,h),4)}, 0")
        for h in range(2):
            for i in range(4):
                bias = (bprev if i < 2 else BC) + (i & 1) * 2
                a(f"v_pk_fma_f32 {vr(S+h*8+2*i,2)}, {vr(S+h*8+2*i,2)}, s[54:55], {vr(bias,2)}")
        MX = 80
        for h in range(2):
            t = S + h * 8
            a(f"v_max3_f32 v{MX+2*h}, v{t}, v{t+1}, v{t+2}")
            a(f"v_max3_f32 v{84+h}, v{t+3}, v{t+4}, v{t+5}")
        for h in range(2):
            t = S + h * 8
            a(f"v_max3_f32 v{MX+2*h}, v{MX+2*h}, v{t+6}, v{t+7}")
        for h in range(2):
            a(f"v_max_f32 v{MX+2*h}, v{MX+2*h}, v{84+h}")
        a(f"v_permlane32_swap_b32 v{MX}, v{MX+2}")
        a(f"v_max_f32 v{MX}, v{MX}, v{MX+2}")
        a(f"v_mov_b32 v{MX+2}, v{MX}")
        a(f"v_permlane16_swap_b32 v{MX}, v{MX+2}")
        a(f"v_max_f32 v{MX}, v{MX}, v{MX+2}")
        a(f"v_mov_b32 v{MX+2}, v{MX}")
        a(f"v_permlane32_swap_b32 v{MX}, v{MX+2}")
        for h in range(2):
            for i in range(4):
                a(f"v_pk_add_f32 {vr(S+h*8+2*i,2)}, {vr(S+h*8+2*i,2)}, {vr(MX+2*h,2)} op_sel_hi:[1,0] neg_lo:[0,1] neg_hi:[0,1]")
        PO = 88
        for h in range(2):
            for i in range(8): a(f"v_exp_f32 v{S+h*8+i}, v{S+h*8+i}")
            for i in range(4): a(f"v_cvt_pk_bf16_f32 v{PO+h*4+i}, v{S+h*8+2*i}, v{S+h*8+2*i+1}")
        O = 96
        for h in range(2):
            a(f"{MF} {vr(O+8+h*4,4)}, {vr(vs(2,rb),4)}, {vr(PO+h*4,4)}, 0")
            a(f"{MF} {vr(O+h*4,4)}, {vr(vs(h,rb),4)}, {vr(PO+h*4,4)}, 0")
        o_finish(a, rb, O, O + 4, O + 8, O + 12, O + 8, O + 12, 112, 116 + rb * 6)
    attention(1, BP)
    a("s_waitcnt lgkmcnt(0)")
    a("s_barrier")
    a(f"s_cmp_eq_u32 s{SW}, 0")
    a("s_cbranch_scc1 qa_halo")
    for h in range(2):
        a(f"ds_read_b128 {vr(kop(0,h),4)}, v11 offset:{XB-4096+h*1024}")
    for b in range(3):
        a(f"ds_read_b64 {vr(vs(b,0),2)}, v12 offset:{XB-4096+2048+b*512}")
    a("s_waitcnt lgkmcnt(0)")
    a("s_branch qa_rb0")
    a.label("qa_halo")
    H = 200
    for t in range(3):
        for pp in range(2):
            a(f"ds_read_b128 {vr(H+(t*2+pp)*4,4)}, v{VL16} offset:{pp*3072+t*1024}")
    a(f"v_lshrrev_b32 v13, 2, v{VM}")
    a("v_lshlrev_b32 v13, 8, v13")
    a(f"v_lshl_add_u32 v13, v{VG}, 6, v13")
    a(f"v_and_b32 v15, 3, v{VM}")
    a("v_lshl_add_u32 v13, v15, 2, v13")
    a("v_add_u32 v13, 6144, v13")
    HV = 64
    for t in range(3):
        if t: a("v_add_u32 v13, 1024, v13")
        a("v_add_u32 v15, 3072, v13")
        for pp, ad in enumerate((13, 15)):
            a(f"ds_read2_b32 {vr(HV+(t*2+pp)*4,2)}, v{ad} offset0:0 offset1:4")
            a(f"ds_read2_b32 {vr(HV+(t*2+pp)*4+2,2)}, v{ad} offset0:8 offset1:12")
    a("s_waitcnt lgkmcnt(0)")
    for base in (H, HV):
        for t in range(3):
            for i in range(2):
                a(f"v_pk_add_f32 {vr(base+t*8+2*i,2)}, {vr(base+t*8+2*i,2)}, {vr(base+t*8+4+2*i,2)}")
    E = H + 16
    a(f"v_pk_mul_f32 {vr(E+2,2)}, {vr(E+2,2)}, v[32:33] op_sel_hi:[1,0]")
    for h in range(2):
        scale_pack_sw(a, kop(0, h), H + h * 8, E + 2 + h, 32)
    for b in range(3):
        scale_pack_n(a, vs(b, 0), HV + b * 8, 44)
    for r in range(2):
        a(f"v_cndmask_b32 v{vs(2,0)+r}, v{vs(2,0)+r}, v28, s[50:51]")
    a.label("qa_rb0")
    attention(0, BP0)

PH = 140
SEL = 16
def gen_qb_body(a, multi):
    def pre():
        a("s_mov_b32 s50, 0x33333333")
        a("s_mov_b32 s51, 0x33333333")
        a(f"v_and_b32 v10, 7, v{VM}")
        a(f"v_lshrrev_b32 v11, 3, v{VM}")
        a("v_add_u32 v11, 2, v11")
        onehot(a, SEL, 10, lambda: a(f"v_cmp_eq_u32 vcc, v11, v{VG}"), 12)
        chunk2_src(a, 20)
    qkv_main(a, False, pre)
    NEG = 180
    VOP = 200
    a(f"v_mov_b32 v28, {ONES}")
    for rb in range(2):
        for b in range(3):
            scale_pack_n(a, VOP + b * 4 + rb * 2, acc(5 + b, rb), 48 + rb * 4)
    for r in range(4):
        a(f"v_cndmask_b32 v{VOP+8+r}, v{VOP+8+r}, v28, s[50:51]")
    for rb in range(2):
        vals = [acc(t, rb) + r for t in range(5) for r in range(4)]
        C, MXC, MNC = 30, 32, 34
        a(f"v_mul_f32 v{C}, {f2u(LOG2E)}, v{RSM+rb}")
        for op, dst in (("v_max3_f32", MXC), ("v_min3_f32", MNC)):
            a(f"{op} v{dst}, v{vals[0]}, v{vals[1]}, v{vals[2]}")
            a(f"{op} v{dst+1}, v{vals[3]}, v{vals[4]}, v{vals[5]}")
            for i in range(6, 18, 4):
                a(f"{op} v{dst}, v{dst}, v{vals[i]}, v{vals[i+1]}")
                a(f"{op} v{dst+1}, v{dst+1}, v{vals[i+2]}, v{vals[i+3]}")
            a(f"{op} v{dst}, v{dst}, v{vals[18]}, v{vals[19]}")
            a(f"{op[:5]}_f32 v{dst}, v{dst}, v{dst+1}")
        a(f"v_mul_f32 v{MXC}, v{MXC}, v{C}")
        a(f"v_mul_f32 v{MNC}, v{MNC}, v{C}")
        for i in range(10):
            x = vals[2 * i]
            a(f"v_pk_fma_f32 {vr(NEG+2*i,2)}, {vr(x,2)}, {vr(C,2)}, {vr(MNC,2)} op_sel_hi:[1,0,0] neg_lo:[0,1,0] neg_hi:[0,1,0]")
            a(f"v_pk_fma_f32 {vr(x,2)}, {vr(x,2)}, {vr(C,2)}, {vr(MXC,2)} op_sel_hi:[1,0,0] neg_lo:[0,0,1] neg_hi:[0,0,1]")
        negs = [NEG + i for i in range(20)]
        for lst in (vals, negs):
            for x in lst: a(f"v_exp_f32 v{x}, v{x}")
        for k, lst in enumerate((vals, negs)):
            s = 36 + 4 * k
            a(f"v_pk_add_f32 {vr(s,2)}, {vr(lst[0],2)}, {vr(lst[2],2)}")
            a(f"v_pk_add_f32 {vr(s+2,2)}, {vr(lst[4],2)}, {vr(lst[6],2)}")
            for i in range(4, 10, 2):
                a(f"v_pk_add_f32 {vr(s,2)}, {vr(s,2)}, {vr(lst[2*i],2)}")
                a(f"v_pk_add_f32 {vr(s+2,2)}, {vr(s+2,2)}, {vr(lst[2*i+2],2)}")
            a(f"v_pk_add_f32 {vr(s,2)}, {vr(s,2)}, {vr(s+2,2)}")
            a(f"v_add_f32 v{s}, v{s}, v{s+1}")
            a(f"v_rcp_f32 v{s}, v{s}")
        for k, lst in enumerate((vals, negs)):
            s = 36 + 4 * k
            for i in range(10):
                a(f"v_pk_mul_f32 {vr(lst[2*i],2)}, {vr(lst[2*i],2)}, {vr(s,2)} op_sel_hi:[1,0]")
            for i in range(10):
                a(f"v_cvt_pk_bf16_f32 v{PH+rb*20+k*10+i}, v{lst[2*i]}, v{lst[2*i]+1}")
    if multi:
        a(f"s_lshl_b32 s44, s{SJ}, 7")
        a(f"s_lshl_b32 s45, s{SRG}, 3")
        a("s_add_u32 s44, s44, s45")
        a(f"s_lshl_b32 s45, s{SW}, 1")
        a("s_add_u32 s44, s44, s45")
        a("s_mul_i32 s44, s44, 5120")
        a(f"s_add_u32 s44, s44, {PQ_OFF}")
        a("s_add_u32 s45, s44, 4096")
        a("s_add_u32 s46, s44, 8192")
        for i in range(10):
            a(f"buffer_store_dwordx4 {vr(PH+4*i,4)}, v{VL16}, s[4:7], s{44+i//4} offen offset:{(i%4)*1024}")
    TT = 64
    KT = 104
    for u in range(5):
        for rb in range(2):
            a(f"{MF} {vr(TT+(u*2+rb)*4,4)}, {vr(PH+rb*20+u*4,4)}, {vr(SEL,4)}, 0")
    for u in range(5):
        for rb in range(2):
            t = TT + (u * 2 + rb) * 4
            a(f"v_cvt_pk_bf16_f32 v{KT+u*4+rb*2}, v{t}, v{t+1}")
            a(f"v_cvt_pk_bf16_f32 v{KT+u*4+rb*2+1}, v{t+2}, v{t+3}")
    KV = 180
    KV = 64
    for u in range(5):
        a(f"{MF} {vr(64+u*4,4)}, {vr(KT+u*4,4)}, {vr(VOP,4)}, 0")
        a(f"{MF} {vr(84+u*4,4)}, {vr(KT+u*4,4)}, {vr(VOP+4,4)}, 0")
        a(f"{MF} {vr(212+u*4,4)}, {vr(KT+u*4,4)}, {vr(VOP+8,4)}, 0")
    a(f"s_mul_i32 s38, s{SW}, 10240")
    a(f"v_add_u32 v10, s38, v{VL16}")
    a("s_mov_b32 exec_hi, 0")
    for u in range(5): a(f"ds_write_b128 v10, {vr(64+u*4,4)} offset:{u*1024}")
    a("s_mov_b32 exec_hi, -1")
    a("s_mov_b32 exec_lo, 0")
    for u in range(5): a(f"ds_write_b128 v10, {vr(84+u*4,4)} offset:{u*1024}")
    a("s_mov_b32 exec_lo, -1")
    for u in range(5): a(f"ds_write_b128 v10, {vr(212+u*4,4)} offset:{5120+u*1024}")
    a("v_lshlrev_b32 v11, 4, v0")
    a(f"s_lshl_b32 s44, s{SJ}, 4")
    a(f"s_add_u32 s44, s44, s{SRG}")
    a(f"s_mul_i32 s44, s44, {KVP_STR}")
    a(f"s_add_u32 s44, s44, s{P_KV}")
    a("v_add_u32 v12, 4096, v11")
    a(f"v_mov_b32 v13, {OOB}")
    a("v_cndmask_b32 v12, v13, v12, s[56:57]")
    a("s_waitcnt lgkmcnt(0)")
    a("s_barrier")
    for c, ad in enumerate((11, 20)):
        for w in range(4):
            a(f"ds_read_b128 {vr(64+(c*4+w)*4,4)}, v{ad} offset:{w*10240}")
    a("s_waitcnt lgkmcnt(0)")
    for c in range(2):
        b = 64 + c * 16
        for i in range(2):
            a(f"v_pk_add_f32 {vr(b+2*i,2)}, {vr(b+2*i,2)}, {vr(b+4+2*i,2)}")
            a(f"v_pk_add_f32 {vr(b+8+2*i,2)}, {vr(b+8+2*i,2)}, {vr(b+12+2*i,2)}")
        for i in range(2):
            a(f"v_pk_add_f32 {vr(b+2*i,2)}, {vr(b+2*i,2)}, {vr(b+8+2*i,2)}")
        a(f"buffer_store_dwordx4 {vr(b,4)}, v{11+c}, s[4:7], s44 offen")

def chunk_decode(a, c, u, g, z):
    a(f"v_subrev_u32 v{z}, 320, v{c}")
    a(f"v_and_b32 v{z}, 0xff, v{z}")
    a(f"v_mul_u32_u24 v{u}, 205, v{z}")
    a(f"v_lshrrev_b32 v{u}, 12, v{u}")
    a(f"v_mul_u32_u24 v{g}, 20, v{u}")
    a(f"v_sub_u32 v{z}, v{z}, v{g}")
    a(f"v_mul_u32_u24 v{g}, 13, v{z}")
    a(f"v_lshrrev_b32 v{g}, 6, v{g}")
    a(f"v_mul_u32_u24 v60, 5, v{g}")
    a(f"v_sub_u32 v{z}, v{z}, v60")

def chunk2_src(a, dst):
    a("v_add_u32 v56, 256, v0")
    chunk_decode(a, 56, 57, 58, 59)
    a("v_lshrrev_b32 v60, 1, v58")
    a("v_lshl_add_u32 v60, v60, 2, v59")
    a("v_subrev_u32 v60, 1, v60")
    a("v_lshrrev_b32 v61, 1, v60")
    a("v_and_b32 v60, 1, v60")
    a("v_lshl_add_u32 v60, v61, 2, v60")
    a("v_add_u32 v60, 2, v60")
    a("v_cmp_eq_u32 vcc, 0, v59")
    a("v_cndmask_b32 v60, v60, 0, vcc")
    a("v_lshl_add_u32 v60, v58, 4, v60")
    a("v_lshl_add_u32 v60, v57, 6, v60")
    a("v_add_u32 v60, 320, v60")
    a("v_cmp_gt_u32 vcc, 320, v56")
    a("v_cndmask_b32 v60, v60, v56, vcc")
    a("v_cmp_gt_u32 s[56:57], 420, v56") if False else None
    a("v_mov_b32 v61, 420")
    a("v_cmp_gt_u32 s[56:57], v61, v56")
    a("v_cndmask_b32 v60, 0, v60, s[56:57]")
    a(f"v_lshlrev_b32 v{dst}, 4, v60")

def gen_ob_body(a, multi):
    KVB = 0; ZOFF = 3360
    a(f"s_lshl_b32 s38, s{SJ}, 4")
    a(f"s_mul_i32 s38, s38, {KVP_STR}")
    a(f"s_add_u32 s38, s38, s{P_KV}")
    a("v_lshlrev_b32 v11, 4, v0")
    a("v_add_u32 v56, 256, v0")
    a("v_add_u32 v12, 4096, v11")
    a(f"v_mov_b32 v13, {OOB}")
    a("v_mov_b32 v61, 420")
    a("v_cmp_gt_u32 s[56:57], v61, v56")
    a("v_cndmask_b32 v12, v13, v12, s[56:57]")
    for r in range(16):
        if r: a(f"s_add_u32 s38, s38, {KVP_STR}")
        for c in range(2):
            a(f"buffer_load_dwordx4 {ar((r*2+c)*4,4)}, v{11+c}, s[4:7], s38 offen", tag=("p", r))
    if multi:
        a(f"s_lshl_b32 s44, s{SJ}, 7")
        a(f"s_lshl_b32 s45, s{SRG}, 3")
        a("s_add_u32 s44, s44, s45")
        a(f"s_lshl_b32 s45, s{SW}, 1")
        a("s_add_u32 s44, s44, s45")
        a("s_mul_i32 s44, s44, 5120")
        a(f"s_add_u32 s44, s44, {PQ_OFF}")
        a("s_add_u32 s45, s44, 4096")
        a("s_add_u32 s46, s44, 8192")
        for i in range(10):
            a(f"buffer_load_dwordx4 {vr(PH+4*i,4)}, v{VL16}, s[4:7], s{44+i//4} offen offset:{(i%4)*1024}", tag="pq")
    o_store_setup(a)
    def maddr(dst, c):
        a(f"v_bfe_u32 v60, v{c}, 5, 1")
        a("v_mul_u32_u24 v60, 21, v60")
        a(f"v_add_u32 v60, v60, v{VM}")
        a("v_mul_u32_u24 v60, 80, v60")
        a(f"v_lshrrev_b32 v61, 6, v{c}")
        a("v_lshl_add_u32 v60, v61, 4, v60")
        a(f"v_bfe_u32 v61, v{c}, 4, 1")
        a(f"v_lshl_add_u32 v{dst}, v61, 3, v60")
    maddr(20, 0)
    maddr(21, 56)
    chunk_decode(a, 56, 57, 58, 59)
    a("v_add_u32 v60, 15, v59")
    a("v_cmp_eq_u32 vcc, 0, v59")
    a("v_cndmask_b32 v60, v60, 20, vcc")
    a("v_lshrrev_b32 v61, 1, v58")
    a("v_mul_u32_u24 v61, 21, v61")
    a("v_add_u32 v60, v60, v61")
    a("v_mul_u32_u24 v60, 80, v60")
    a("v_lshl_add_u32 v60, v57, 4, v60")
    a("v_and_b32 v61, 1, v58")
    a("v_lshl_add_u32 v60, v61, 3, v60")
    a("v_cmp_gt_u32 vcc, 320, v56")
    a("v_cndmask_b32 v21, v60, v21, vcc")
    a(f"v_mov_b32 v60, {ZOFF+96}")
    a("v_cndmask_b32 v21, v60, v21, s[56:57]")
    a(f"v_mov_b32 v60, {ZOFF}")
    a(f"v_mul_u32_u24 v61, 80, v{VM}")
    a(f"v_cmp_eq_u32 vcc, 0, v{VG}")
    a("v_cndmask_b32 v22, v60, v61, vcc")
    a("v_add_u32 v61, 1680, v61")
    a(f"v_cmp_eq_u32 vcc, 1, v{VG}")
    a("v_cndmask_b32 v23, v60, v61, vcc")
    a(f"v_and_b32 v57, 3, v{VM}")
    a(f"v_lshrrev_b32 v58, 2, v{VM}")
    a("v_lshl_add_u32 v58, v58, 1, v57")
    a("v_subrev_u32 v58, 2, v58")
    a("v_lshrrev_b32 v59, 2, v58")
    a("v_and_b32 v58, 3, v58")
    a("v_add_u32 v58, 16, v58")
    a("v_cmp_gt_u32 vcc, 2, v57")
    a("v_cndmask_b32 v59, v59, v57, vcc")
    a("v_cndmask_b32 v58, v58, 20, vcc")
    a("v_mul_u32_u24 v61, 21, v59")
    a("v_add_u32 v61, v61, v58")
    a("v_mul_u32_u24 v61, 80, v61")
    a(f"v_cmp_eq_u32 vcc, v59, v{VG}")
    a("v_cndmask_b32 v24, v60, v61, vcc")
    a("v_mov_b32 v26, 0")
    a(f"v_lshlrev_b32 v25, 2, v{VL}")
    a(f"v_min_u32 v25, 92, v25")
    a(f"ds_write_b32 v25, v26 offset:{ZOFF}")
    SUM = 64
    for r in range(16):
        a.wait_vm(("p", r))
        for c in range(2):
            for i in range(4):
                if r == 0: a(f"v_accvgpr_read_b32 v{SUM+c*4+i}, a{(r*2+c)*4+i}")
                else: a(f"v_accvgpr_read_b32 v{72+c*4+i}, a{(r*2+c)*4+i}")
            if r:
                for i in range(2):
                    a(f"v_pk_add_f32 {vr(SUM+c*4+2*i,2)}, {vr(SUM+c*4+2*i,2)}, {vr(72+c*4+2*i,2)}")
    for c in range(2):
        a(f"v_cvt_pk_bf16_f32 v{80+2*c}, v{SUM+c*4}, v{SUM+c*4+1}")
        a(f"v_cvt_pk_bf16_f32 v{81+2*c}, v{SUM+c*4+2}, v{SUM+c*4+3}")
        a(f"ds_write_b64 v{20+c}, {vr(80+2*c,2)}")
    a("s_waitcnt lgkmcnt(0)")
    a("s_barrier")
    AO = 180
    for t in range(3):
        for u in range(5):
            a(f"ds_read_b128 {vr(AO+(t*5+u)*4,4)}, v{22+t} offset:{16*u}")
    a("s_waitcnt vmcnt(0) lgkmcnt(0)")
    Dd = 64
    for u in range(5):
        for rb in range(2):
            for t in range(3):
                d = Dd + (rb * 3 + t) * 4
                a(f"{MF} {vr(d,4)}, {vr(AO+(t*5+u)*4,4)}, {vr(PH+rb*20+u*4,4)}, {'0' if u==0 else vr(d,4)}")
    for rb in range(2):
        d = Dd + rb * 12
        a(f"v_add_f32 v{d+8}, {f2u(1e-6)}, v{d+8}")
        a(f"v_add_f32 v{d+9}, {f2u(1e-6)}, v{d+9}")
        o_finish(a, rb, d, d + 4, d + 8, d + 8, d + 8, d + 9, 112, 116 + rb * 6)

def gen_p_body(a, final):
    a(f"s_lshr_b32 s26, s{SJ}, 3")
    a(f"s_and_b32 s27, s{SJ}, 7")
    a(f"s_lshl_b32 s28, s{SRG}, 1")
    a("s_add_u32 s28, s28, s26")
    a("s_lshl_b32 s28, s28, 2")
    a("s_mul_i32 s29, s28, 20480")
    a(f"s_mul_i32 s30, s{SW}, 5120")
    a("s_add_u32 s31, s29, s30")
    a(f"s_add_u32 s31, s31, s{P_O}")
    a("s_add_u32 s32, s31, 4096")
    a(f"s_mul_i32 s33, s27, {WO_CG}")
    a("s_mul_i32 s34, s30, 5")
    a("s_add_u32 s33, s33, s34")
    a(f"s_add_u32 s33, s33, s{P_WO}")
    VO = 8
    for rho in range(4):
        a(f"s_add_u32 s35, s{SW}, {rho}")
        a("s_and_b32 s35, s35, 3")
        a("s_mul_i32 s36, s35, 20480")
        a(f"v_add_u32 v{VO+rho}, s36, v{VL16}")
        if rho:
            a("s_mul_i32 s36, s35, 15360")
            a(f"s_add_u32 s36, s36, {(rho-1)*5120}")
            a(f"v_add_u32 v{12+rho}, s36, v{VL16}")
    a(f"v_add_u32 v7, 4096, v{VL16}")
    WFp = lambda n, b: (n * 5 + b) * 4
    OFp = lambda n, rho: 100 + (n * 4 + rho) * 4
    for n in range(5):
        if n: a(f"s_add_u32 s33, s33, 5120")
        for b in range(5):
            if b < 4: a(f"buffer_load_dwordx4 {ar(WFp(n,b),4)}, v{VL16}, s[4:7], s33 offen offset:{b*1024}", tag=("n", n))
            else: a(f"buffer_load_dwordx4 {ar(WFp(n,b),4)}, v7, s[4:7], s33 offen", tag=("n", n))
        for rho in range(4):
            if n < 4: a(f"buffer_load_dwordx4 {ar(OFp(n,rho),4)}, v{VO+rho}, s[4:7], s31 offen offset:{n*1024}", tag=("n", n))
            else: a(f"buffer_load_dwordx4 {ar(OFp(n,rho),4)}, v{VO+rho}, s[4:7], s32 offen", tag=("n", n))
    a("s_lshr_b32 s35, s27, 1")
    a("s_mul_i32 s35, s35, 5")
    a("s_and_b32 s36, s27, 1")
    a("s_mul_i32 s37, s36, 3")
    a("s_add_u32 s37, s37, s35")
    a("s_add_u32 s35, s35, 2")
    a(f"s_add_u32 s38, s28, s{SW}")
    a("s_mul_i32 s39, s38, 20480")
    a("s_lshl_b32 s40, s37, 10")
    a("s_add_u32 s40, s40, s39")
    a("s_lshl_b32 s41, s35, 10")
    a("s_add_u32 s41, s41, s39")
    a("s_lshl_b32 s42, s36, 9")
    a("s_add_u32 s41, s41, s42")
    a(f"v_lshrrev_b32 v16, 1, v{VG}")
    a("v_lshlrev_b32 v16, 8, v16")
    a(f"v_lshl_add_u32 v16, v{VM}, 4, v16")
    a(f"v_and_b32 v17, 1, v{VG}")
    a("v_lshl_add_u32 v16, v17, 3, v16")
    a(f"s_add_u32 s42, s40, s{P_X}")
    a(f"s_add_u32 s43, s41, s{P_X}")
    RX = 20
    a(f"buffer_load_dwordx4 {vr(RX,4)}, v{VL16}, s[4:7], s42 offen", tag="res")
    a(f"buffer_load_dwordx4 {vr(RX+4,4)}, v{VL16}, s[4:7], s42 offen offset:1024", tag="res")
    a(f"buffer_load_dwordx2 {vr(RX+8,2)}, v16, s[4:7], s43 offen", tag="res")
    A_ = lambda rho, b: 64 + (rho * 5 + b) * 4
    for n in range(5):
        a.wait_vm(("n", n))
        order = [(rho, b) for rho in (1, 2, 3, 0) for b in range(5)]
        for rho, b in order:
            a(f"{MF} {vr(A_(rho,b),4)}, {ar(WFp(n,b),4)}, {ar(OFp(n,rho),4)}, {'0' if n==0 else vr(A_(rho,b),4)}")
    for rho in range(1, 4):
        for b in range(5):
            a(f"ds_write_b128 v{12+rho}, {vr(A_(rho,b),4)} offset:{b*1024}")
    a(f"s_mul_i32 s36, s{SW}, 15360")
    a(f"v_add_u32 v12, s36, v{VL16}")
    XR = 32
    a.wait_vm("res")
    for i in range(10):
        a(f"v_lshlrev_b32 v{XR+2*i}, 16, v{RX+i}")
        a(f"v_and_b32 v{XR+2*i+1}, 0xffff0000, v{RX+i}")
    a("s_waitcnt lgkmcnt(0)")
    a("s_barrier")
    T = 144
    for s in range(3):
        for b in range(5):
            a(f"ds_read_b128 {vr(T+(s*5+b)*4,4)}, v12 offset:{s*5120+b*1024}")
    for s in range(3):
        a(f"s_waitcnt lgkmcnt({10-5*s})")
        for i in range(10):
            a(f"v_pk_add_f32 {vr(64+2*i,2)}, {vr(64+2*i,2)}, {vr(T+s*20+2*i,2)}")
    Y = 84
    for i in range(10):
        a(f"v_cvt_pk_bf16_f32 v{Y+i}, v{64+2*i}, v{65+2*i}")
    for i in range(10):
        a(f"v_lshlrev_b32 v{64+2*i}, 16, v{Y+i}")
        a(f"v_and_b32 v{65+2*i}, 0xffff0000, v{Y+i}")
    for i in range(10):
        a(f"v_pk_add_f32 {vr(64+2*i,2)}, {vr(64+2*i,2)}, {vr(XR+2*i,2)}")
    OUT = 96
    for i in range(10):
        a(f"v_cvt_pk_bf16_f32 v{OUT+i}, v{64+2*i}, v{65+2*i}")
    if final:
        a(f"v_mul_u32_u24 v17, 1280, v{VM}")
        a(f"v_lshl_add_u32 v18, v{VG}, 4, v17")
        a(f"v_lshl_add_u32 v19, v{VG}, 3, v17")
        a("s_lshl_b32 s42, s37, 6")
        a("s_add_u32 s42, s42, s39")
        a("s_lshl_b32 s43, s35, 6")
        a("s_add_u32 s43, s43, s39")
        a("s_and_b32 s36, s27, 1")
        a("s_lshl_b32 s36, s36, 5")
        a("s_add_u32 s43, s43, s36")
        a(f"buffer_store_dwordx4 {vr(OUT,4)}, v18, s[8:11], s42 offen")
        a(f"buffer_store_dwordx4 {vr(OUT+4,4)}, v18, s[8:11], s42 offen offset:64")
        a(f"buffer_store_dwordx2 {vr(OUT+8,2)}, v19, s[8:11], s43 offen")
        return
    a(f"s_add_u32 s42, s40, s{P_XD}")
    a(f"s_add_u32 s43, s41, s{P_XD}")
    a(f"buffer_store_dwordx4 {vr(OUT,4)}, v{VL16}, s[4:7], s42 offen")
    a(f"buffer_store_dwordx4 {vr(OUT+4,4)}, v{VL16}, s[4:7], s42 offen offset:1024")
    a(f"buffer_store_dwordx2 {vr(OUT+8,2)}, v16, s[4:7], s43 offen")
    for i in range(10):
        a(f"v_lshlrev_b32 v{64+2*i}, 16, v{OUT+i}")
        a(f"v_and_b32 v{65+2*i}, 0xffff0000, v{OUT+i}")
    a(f"v_pk_add_f32 v[108:109], v[64:65], v[66:67]")
    for i in range(2, 10):
        a(f"v_pk_add_f32 v[108:109], v[108:109], {vr(64+2*i,2)}")
    a("v_add_f32 v108, v108, v109")
    xreduce_add(a, 108, 109)
    a(f"v_mul_f32 v110, {f2u(-1.0/80)}, v108")
    for i in range(10):
        a(f"v_pk_add_f32 {vr(64+2*i,2)}, {vr(64+2*i,2)}, v[110:111] op_sel_hi:[1,0]")
    a("v_pk_mul_f32 v[112:113], v[64:65], v[64:65]")
    for i in range(1, 10):
        a(f"v_pk_fma_f32 v[112:113], {vr(64+2*i,2)}, {vr(64+2*i,2)}, v[112:113]")
    a("v_add_f32 v109, v112, v113")
    xreduce_add(a, 109, 112)
    a(f"v_lshlrev_b32 v17, 6, v{VM}")
    a(f"v_mov_b32 v18, {OOB}")
    a(f"v_cmp_eq_u32 vcc, 0, v{VG}")
    a("v_cndmask_b32 v17, v18, v17, vcc")
    a("s_lshl_b32 s42, s38, 10")
    a("s_lshl_b32 s43, s27, 3")
    a("s_add_u32 s42, s42, s43")
    a(f"s_add_u32 s42, s42, s{P_STD}")
    a("buffer_store_dwordx2 v[108:109], v17, s[4:7], s42 offen")

def build_multi():
    a = Asm()
    launches = []
    kernels = []
    a.raw('.amdgcn_target "amdgcn-amd-amdhsa--gfx950"\n.text')
    kernels.append(gen_prep(a)); launches.append(("prep_kernel", 244, 12288))
    def stub(name, body_label, params):
        kernel_head(a, name)
        for k, v in params.items(): a(f"s_mov_b32 s{k}, {v}")
        a(f"s_branch {body_label}")
        kernels.append(name)
    def xf(i): return XF_OFF + i * XF_SZ
    def st(i): return ST_OFF + i * ST_SZ
    def of(i): return OF_OFF + i * XF_SZ
    for l in (0, 2):
        stub(f"qa{l}_kernel", "qa_body", {P_X: xf(l), P_ST: st(l), P_O: of(l), P_WQ: WQ_OFF})
    for l in (1, 3):
        stub(f"qb{l}_kernel", "qb_body", {P_X: xf(l), P_ST: st(l), P_WQ: WQ_OFF + 16 * WQ_TILE, P_KV: KVP_OFF + (l >> 1) * KVP_SZ})
        stub(f"ob{l}_kernel", "ob_body", {P_O: of(l), P_KV: KVP_OFF + (l >> 1) * KVP_SZ})
    for l in (0, 1, 2):
        stub(f"p{l}_kernel", "p_body", {P_X: xf(l), P_O: of(l), P_XD: xf(l + 1), P_STD: st(l + 1), P_WO: WO_OFF + (l & 1) * WO_L})
    a.at_branch = {}
    for lab, fn in (("qa", lambda: gen_qa_body(a)), ("qb", lambda: gen_qb_body(a, True)), ("ob", lambda: gen_ob_body(a, True)), ("p", lambda: gen_p_body(a, False))):
        a.raw(".p2align 8"); a.label(lab + "_body"); a.hist = []; a.vm_reset()
        common_prologue(a, 256, lab + "_exit")
        fn()
        a.label(lab + "_exit")
        a("s_endpgm")
    kernel_head(a, "p3_kernel"); kernels.append("p3_kernel")
    for k, v in {P_X: xf(3), P_O: of(3), P_WO: WO_OFF + WO_L}.items(): a(f"s_mov_b32 s{k}, {v}")
    common_prologue(a, 256, "p3_exit", aux_slot=7, aux_bytes=2621440)
    gen_p_body(a, True)
    a.label("p3_exit")
    a("s_endpgm")
    for l in range(4):
        if l % 2 == 0: launches.append((f"qa{l}_kernel", 256, LDS_Q))
        else:
            launches.append((f"qb{l}_kernel", 256, LDS_Q)); launches.append((f"ob{l}_kernel", 256, 4096))
        launches.append((f"p{l}_kernel", 256, 61440))
    head = "".join(f"; @launch kernel={k} grid=({g},1,1) block=(256,1,1) lds={l}\n" for k, g, l in launches)
    tail = '.section .rodata,"a"\n' + "".join(descriptor(k) for k in kernels)
    return head + a.text() + tail

if __name__ == "__main__":
    out = sys.argv[1] if len(sys.argv) > 1 else f"cdna_kernels/{NAME}.s"
    s = build_multi()
    open(out, "w").write(s)
    print("wrote", out, len(s), "bytes")
```

```python
import re

TRANS = ("v_exp_f32", "v_log_f32", "v_rcp_f32", "v_rsq_f32", "v_sqrt_f32", "v_sin_f32", "v_cos_f32")

def regs_of(tok):
    tok = tok.strip()
    neg = tok.startswith("-")
    if neg: tok = tok[1:]
    if tok.startswith("abs(") or tok.startswith("|"):
        tok = tok.strip("|")
        tok = tok[4:-1] if tok.startswith("abs(") else tok
    m = re.fullmatch(r"([vas])(\d+)", tok)
    if m: return [(m.group(1), int(m.group(2)))]
    m = re.fullmatch(r"([vas])\[(\d+):(\d+)\]", tok)
    if m: return [(m.group(1), i) for i in range(int(m.group(2)), int(m.group(3)) + 1)]
    if tok in ("vcc", "vcc_lo", "vcc_hi"): return [("x", "vcc")]
    if tok in ("exec", "exec_lo", "exec_hi"): return [("x", "exec")]
    if tok == "m0": return [("x", "m0")]
    return []

def split_ops(s):
    ops, depth, cur = [], 0, ""
    for ch in s:
        if ch in "[(": depth += 1
        if ch in "])": depth -= 1
        if ch == "," and depth == 0:
            ops.append(cur.strip()); cur = ""
        else: cur += ch
    if cur.strip(): ops.append(cur.strip())
    return ops

class Ins:
    __slots__ = ("text", "op", "kind", "dst", "src", "srcc", "passes", "wide_store", "trans", "perm", "lds_dma", "states", "ab", "rdlane")
    def __init__(self, text):
        self.text = text
        t = text.split(";")[0].strip()
        parts = t.split(None, 1)
        op = parts[0]; rest = parts[1] if len(parts) > 1 else ""
        self.op = op
        ops = split_ops(rest)
        mods = ""
        if ops:
            last = ops[-1].split(None, 1)
            ops[-1] = last[0]; mods = last[1] if len(last) > 1 else ""
        R = [regs_of(o) for o in ops]
        flat = lambda l: [x for y in l for x in y]
        self.dst, self.src, self.srcc, self.ab = [], [], [], []
        self.passes = 0; self.wide_store = False; self.trans = False; self.perm = False; self.lds_dma = False; self.rdlane = False
        self.states = 1
        if op.startswith("v_mfma"):
            self.kind = "mfma"; self.dst = R[0]; self.ab = R[1] + R[2]; self.srcc = R[3]; self.src = self.ab + self.srcc
            self.passes = 8 if "32x32x16" in op else 4
            assert "16x16x32_bf16" in op or "32x32x16_bf16" in op, op
        elif op.startswith("v_"):
            self.kind = "valu"
            base = op.replace("_e32", "").replace("_e64", "")
            if base.startswith("v_cmp"):
                self.dst = R[0]; self.src = flat(R[1:])
            elif "permlane" in base and "swap" in base:
                self.dst = R[0] + R[1]; self.src = R[0] + R[1]; self.perm = True
            elif base in ("v_readfirstlane_b32", "v_readlane_b32"):
                self.dst = R[0]; self.src = flat(R[1:]); self.rdlane = True
            elif base in ("v_add_co_u32", "v_sub_co_u32", "v_addc_co_u32"):
                self.dst = R[0] + R[1]; self.src = flat(R[2:])
            else:
                self.dst = R[0]; self.src = flat(R[1:])
                if base.startswith("v_fmac") or base.startswith("v_dot2c") or base.startswith("v_pk_fmac"): self.src = self.src + R[0]
                if base == "v_cndmask_b32" and len(ops) == 3: self.src = self.src + [("x", "vcc")]
                if "dpp" in base or "row_" in mods or "quad_perm" in mods: self.perm = True
            self.trans = base in TRANS
        elif op.startswith("buffer_load") or op.startswith("global_load"):
            self.kind = "vmem"
            if re.search(r"\blds\b", mods) or "_lds_" in op:
                self.lds_dma = True; self.src = flat(R) + [("x", "m0")]
            else:
                self.dst = R[0]; self.src = flat(R[1:])
                if "d16" in op: self.src = self.src + R[0]
        elif op.startswith("buffer_store") or op.startswith("global_store"):
            self.kind = "vmem"; self.src = flat(R)
            self.wide_store = op.endswith("x4") or op.endswith("x3")
            if self.wide_store: self.srcc = R[0] if op.startswith("buffer") else R[1]
        elif op.startswith("buffer_atomic") or op.startswith("global_atomic"):
            self.kind = "vmem"; self.src = flat(R)
            if "sc0" in mods: self.dst = R[0]
        elif op.startswith("buffer_") :
            self.kind = "vmem"
        elif op.startswith("ds_read") or op.startswith("ds_bpermute") or op.startswith("ds_swizzle"):
            self.kind = "ds"; self.dst = R[0]; self.src = flat(R[1:])
        elif op.startswith("ds_"):
            self.kind = "ds"; self.src = flat(R)
        elif op == "s_nop":
            self.kind = "salu"; self.states = int(ops[0], 0) + 1
        elif op.startswith("s_"):
            self.kind = "salu"
            if op.startswith("s_cmp") or op.startswith("s_cbranch") or op in ("s_branch", "s_barrier", "s_waitcnt", "s_endpgm", "s_sleep", "s_setprio", "s_setpc_b64"):
                self.src = flat(R)
            else:
                self.dst = R[0] if R else []; self.src = flat(R[1:])
                if "saveexec" in op: self.dst = self.dst + [("x", "exec")]
        else:
            raise ValueError("unknown instr: " + text)

def need(prev, cur):
    n = 0
    pd = set(prev.dst)
    cs, cd = set(cur.src), set(cur.dst)
    isvec = lambda r: r[0] in "va"
    if prev.kind == "valu":
        pv = {r for r in pd if isvec(r)}
        ps = {r for r in pd if r[0] == "s" or r == ("x", "vcc")}
        if cur.kind == "mfma" and pv & cs: n = max(n, 2)
        if cur.kind == "valu":
            if cur.perm and pv & cs: n = max(n, 2)
            if cur.rdlane and pv & cs: n = max(n, 1)
            if prev.trans and pv & (cs | cd): n = max(n, 1)
            if ps & cs: n = max(n, 4 if cur.rdlane else 2)
        if cur.kind == "vmem" and ps & cs: n = max(n, 5)
        if cur.kind == "salu" and ps & cs: n = max(n, 1)
        if ("x", "exec") in pd: n = max(n, 5)
    if prev.kind == "mfma":
        p = prev.passes
        big = {4: 8, 8: 12}[p]
        if cur.kind == "mfma":
            if pd & set(cur.ab): n = max(n, big)
            if pd & set(cur.srcc):
                if not (cur.srcc == prev.dst and cur.passes == p): n = max(n, {4: 6, 8: 10}[p])
            elif pd & cd: n = max(n, big)
        elif cur.kind in ("valu", "vmem", "ds"):
            if pd & (cs | cd): n = max(n, big)
            if cur.kind == "valu" and set(prev.srcc) & cd: n = max(n, {4: 3, 8: 7}[p])
    if prev.kind == "vmem" and prev.wide_store:
        if set(prev.srcc) & cd: n = max(n, 2)
    if prev.kind == "salu" and ("x", "m0") in pd and cur.lds_dma: n = max(n, 1)
    return n

class Asm:
    def __init__(self):
        self.lines = []
        self.hist = []
        self.at_branch = {}
        self.vm = []
        self.lg = []
        self.uid = 0
        self.nnop = 0
    def raw(self, s): self.lines.append(s)
    def comment(self, s): self.lines.append("  ; " + s)
    def _age(self, k):
        self.hist = [(i, a + k) for i, a in self.hist if a + k < 24]
    def __call__(self, text, tag=None):
        ins = Ins(text)
        req = 0
        for p, age in self.hist:
            r = need(p, ins) - age
            if r > req: req = r
        while req > 0:
            k = min(req, 16)
            self.lines.append(f"  s_nop {k-1}"); self._age(k); req -= k; self.nnop += 1
        self.lines.append("  " + text)
        self._age(ins.states)
        self.hist.append((ins, 0))
        if ins.kind == "vmem" and not ins.op.startswith("buffer_inv") and not ins.op.startswith("buffer_wbl2"):
            self.vm.append(tag)
        if ins.kind == "ds": self.lg.append(tag)
        if ins.op == "s_waitcnt" and "lgkmcnt(0)" in text: self.lg = []
        if ins.op.startswith("s_cbranch") or ins.op == "s_branch":
            lab = text.split()[1]
            self.at_branch.setdefault(lab, []).append(list(self.hist))
            if ins.op == "s_branch": self.hist = []
        if ins.op == "s_endpgm": self.hist = []
        return ins
    def peek(self, text):
        ins = Ins(text)
        req = 0
        for p, age in self.hist:
            r = need(p, ins) - age
            if r > req: req = r
        return req
    def emit_item(self, x):
        if isinstance(x, tuple): self(x[0], tag=x[1])
        elif isinstance(x, list):
            for y in x: self.emit_item(y)
        else: self(x)
    def lg_n(self, tag):
        idx = [i for i, t in enumerate(self.lg) if t == tag]
        if not idx: return None
        return min(len(self.lg) - 1 - idx[-1], 15)
    def wait_str(self, vtag=None, ltag=None):
        parts = []
        if vtag is not None: parts.append(f"vmcnt({min(self.vm_count_after(vtag), 63)})")
        if ltag is not None:
            n = self.lg_n(ltag)
            if n is not None: parts.append(f"lgkmcnt({n})")
        return ("s_waitcnt " + " ".join(parts)) if parts else None
    def merge(self, main, filler, slots=1, lat=6):
        filler = list(filler)
        first = lambda x: (first(x[0]) if isinstance(x, list) else (x[0] if isinstance(x, tuple) else x))
        def cost(x):
            if isinstance(x, list): return sum(cost(y) for y in x)
            t = first(x)
            return 2 if t.startswith(TRANS) else 1
        def retag(x):
            if isinstance(x, list): return [retag(y) for y in x]
            if isinstance(x, str) and x.startswith("ds_"): return (x, "F")
            return x
        nm = 0; last_ds = -99
        def step(force=False):
            nonlocal last_ds
            f = filler[0]
            if f in ("WAITL", "BAR"):
                if not force and nm - last_ds < lat: return None
                w = self.wait_str(ltag="F")
                if w: self(w)
                if f == "BAR": self("s_barrier")
                filler.pop(0); return 1
            if isinstance(f, tuple) and f[0] == "HOLD":
                if not force and nm < f[1]: return None
                filler.pop(0); return 0
            if not force and self.peek(first(f)) > 0: return None
            self.emit_item(retag(f)); filler.pop(0)
            if "ds_" in str(f): last_ds = nm
            return cost(f)
        credit = 0.0
        for x in main:
            if callable(x): x = x()
            if x is None: continue
            self.emit_item(x)
            if first(x).startswith("v_mfma"):
                nm += 1
                credit = min(credit + slots, 2 * slots)
                while filler and credit >= 1:
                    c = step()
                    if c is None: break
                    credit -= c
            elif not first(x).startswith("s_waitcnt"):
                credit -= cost(x) * self.main_cost
        while filler: step(force=True)
    main_cost = 1.0
    def label(self, name):
        self.lines.append(name + ":")
        for h in self.at_branch.pop(name, []):
            self.hist = self.hist + h
    def newlabel(self, base="L"):
        self.uid += 1
        return f"{base}_{self.uid}"
    def vm_reset(self): self.vm = []
    def vm_count_after(self, tag):
        idx = max(i for i, t in enumerate(self.vm) if t == tag)
        return len(self.vm) - 1 - idx
    def wait_vm_str(self, tag, lgkm=None):
        n = min(self.vm_count_after(tag), 63)
        s = f"s_waitcnt vmcnt({n})"
        if lgkm is not None: s += f" lgkmcnt({lgkm})"
        return s
    def wait_vm(self, tag, lgkm=None):
        self(self.wait_vm_str(tag, lgkm))
    def text(self): return "\n".join(self.lines) + "\n"

def vr(b, n=1, k="v"):
    return f"{k}{b}" if n == 1 else f"{k}[{b}:{b+n-1}]"
def ar(b, n=1): return vr(b, n, "a")
def sr(b, n=1): return vr(b, n, "s")
```

```python
import sys, math, struct
from asmlib import *

NAME = "interleave_layers__sliding_local_dilated__linear_kernel_hedgehog__prompt"
WQ_OFF = 0; WQ_TILE = 163840
WO_OFF = 32 * WQ_TILE; WO_L = 819200; WO_CG = 102400
XF_OFF = 7 << 20; XF_SZ = 2621440
OF_OFF = XF_OFF + 4 * XF_SZ
ST_OFF = OF_OFF + 4 * XF_SZ; ST_SZ = 131072
KVP_OFF = ST_OFF + 4 * ST_SZ; KVP_STR = 7168; KVP_SZ = 256 * KVP_STR
FLG_OFF = KVP_OFF + 2 * KVP_SZ
FO_OFF = FLG_OFF; FX_OFF = FLG_OFF + 16384; FK_OFF = FLG_OFF + 32768; FLG_SZ = 40960
WS_USED = FLG_OFF + FLG_SZ
PROF_OFF = WS_USED; WS_USED += 16 * 256 * 4 * 128
OOB = 0x70000000
KA = 5120; KB = 2560; RGB = 107520
EXA = 65536
RED = 102400
LDS_Q = 163840
PROF = False; MAP = 1; LA = 7; SC = "sc1"; SLOTS = 2.0; DBG = set()
def f2u(x): return struct.unpack("<I", struct.pack("<f", x))[0]
LOG2E = 1.4426950408889634
ONES = 0x3F803F80
MF = "v_mfma_f32_16x16x32_bf16"

SW, SRG, SJ, SL = 12, 13, 14, 15
P_X, P_ST, P_O, P_WQ, P_WN, P_WO, P_KV, P_FL = 16, 17, 18, 19, 20, 21, 22, 23
VL, VL16, VM, VG = 1, 2, 3, 4
VL16B, VLA, VLB, VLX, VHA, VHB, VHX = 5, 6, 7, 8, 9, 10, 11
VOX = 14
RES = 246
S_FX, S_FO = 98, 99

_st = [0]
def stamp(a, i):
    if PROF:
        a(f"s_memrealtime s[{64+2*i}:{65+2*i}]")
        a("s_waitcnt lgkmcnt(0)")
def stamp_flush(a, n, phase):
    if not PROF: return
    stamp(a, n)
    a(f"s_mul_i32 s96, s{SL}, 3")
    a(f"s_add_u32 s96, s96, {phase}")
    a("s_lshl_b32 s96, s96, 8")
    a("s_add_u32 s96, s96, s2")
    a("s_lshl_b32 s96, s96, 2")
    a(f"s_add_u32 s96, s96, s{SW}")
    a("s_lshl_b32 s96, s96, 7")
    a(f"s_add_u32 s96, s96, {PROF_OFF}")
    a("v_mov_b32 v244, 0")
    for i in range(10):
        a(f"v_mov_b32 v245, s{64+2*i}")
        a(f"buffer_store_dword v245, v244, s[4:7], s96 offen offset:{4*i}")

def kernel_head(a, name):
    a.raw(f".globl {name}\n.p2align 8\n.type {name},@function\n{name}:")
    a.hist = []; a.vm_reset()

def descriptor(name, vgpr=512, accum=256):
    return f""".p2align 6
.amdhsa_kernel {name}
  .amdhsa_next_free_vgpr {vgpr}
  .amdhsa_next_free_sgpr 102
  .amdhsa_accum_offset {accum}
  .amdhsa_group_segment_fixed_size 0
  .amdhsa_kernarg_size 80
  .amdhsa_user_sgpr_count 2
  .amdhsa_user_sgpr_kernarg_segment_ptr 1
  .amdhsa_system_sgpr_workgroup_id_x 1
.end_amdhsa_kernel
"""

def common_prologue(a, nwg, exit_label, aux_slot=None, aux_bytes=0, mapping=True):
    a(f"s_cmp_ge_u32 s2, {nwg}")
    a(f"s_cbranch_scc1 {exit_label}")
    a("s_load_dwordx2 s[4:5], s[0:1], 72")
    if aux_slot is not None:
        a(f"s_load_dwordx2 s[8:9], s[0:1], {aux_slot*8}")
    a("v_lshrrev_b32 v5, 6, v0")
    a(f"v_and_b32 v{VL}, 63, v0")
    a(f"v_readfirstlane_b32 s{SW}, v5")
    a(f"v_lshlrev_b32 v{VL16}, 4, v{VL}")
    a(f"v_and_b32 v{VM}, 15, v{VL}")
    a(f"v_lshrrev_b32 v{VG}, 4, v{VL}")
    a(f"s_mov_b32 s6, {WS_USED}")
    a("s_mov_b32 s7, 0x20000")
    if aux_slot is not None:
        a(f"s_mov_b32 s10, {aux_bytes}")
        a("s_mov_b32 s11, 0x20000")
    if mapping:
        a("s_and_b32 s24, s2, 7")
        a("s_lshr_b32 s25, s2, 3")
        a(f"s_and_b32 s{SJ}, s25, {(16>>MAP)-1}")
        a(f"s_lshr_b32 s25, s25, {4-MAP}")
        a(f"s_and_b32 s3, s24, {(1<<MAP)-1}")
        a(f"s_lshl_b32 s3, s3, {4-MAP}")
        a(f"s_add_u32 s{SJ}, s{SJ}, s3")
        a(f"s_lshr_b32 s24, s24, {MAP}")
        a(f"s_lshl_b32 s24, s24, {1+MAP}")
        a(f"s_add_u32 s{SRG}, s24, s25")
    a("s_waitcnt lgkmcnt(0)")
    a("s_and_b32 s5, s5, 0xffff")
    if aux_slot is not None:
        a("s_and_b32 s9, s9, 0xffff")

def onehot(a, dst, slot_v, valid_cmp_emit, tmp):
    t0, t1 = tmp, tmp + 1
    a(f"v_and_b32 v{t0}, 1, v{slot_v}")
    a(f"v_lshlrev_b32 v{t0}, 4, v{t0}")
    a(f"v_mov_b32 v{t1}, 0x3f80")
    a(f"v_lshlrev_b32 v{t0}, v{t0}, v{t1}")
    valid_cmp_emit()
    a(f"v_cndmask_b32 v{t0}, 0, v{t0}, vcc")
    a(f"v_lshrrev_b32 v{t1}, 1, v{slot_v}")
    for r in range(4):
        a(f"v_cmp_eq_u32 vcc, {r}, v{t1}")
        a(f"v_cndmask_b32 v{dst+r}, 0, v{t0}, vcc")

def xreduce_l(v, t, op):
    return [f"v_mov_b32 v{t}, v{v}", f"v_permlane32_swap_b32 v{v}, v{t}", f"{op} v{v}, v{v}, v{t}",
            f"v_mov_b32 v{t}, v{v}", f"v_permlane16_swap_b32 v{v}, v{t}", f"{op} v{v}, v{v}, v{t}"]
def xreduce_add(a, v, t):
    for x in xreduce_l(v, t, "v_add_f32"): a(x)

def gen_prep(a):
    name = "prep_kernel"
    kernel_head(a, name)
    common_prologue(a, 254, "prep_exit", mapping=False)
    a("s_cmp_ge_u32 s2, 244")
    a("s_cbranch_scc1 prep_z")
    a("s_load_dwordx4 s[28:31], s[0:1], 0")
    a("s_load_dwordx2 s[32:33], s[0:1], 16")
    a("s_load_dwordx4 s[36:39], s[0:1], 32")
    a("s_load_dwordx2 s[34:35], s[0:1], 48")
    TA, TB = 8, 12
    a(f"v_and_b32 v6, 7, v{VM}")
    a(f"v_lshrrev_b32 v7, 3, v{VM}")
    onehot(a, TA, 6, lambda: a(f"v_cmp_eq_u32 vcc, v7, v{VG}"), 16)
    a("v_add_u32 v7, 2, v7")
    onehot(a, TB, 6, lambda: a(f"v_cmp_eq_u32 vcc, v7, v{VG}"), 16)
    a("s_waitcnt lgkmcnt(0)")
    a("s_cmp_ge_u32 s2, 180")
    a("s_cbranch_scc1 prep_x")
    a("s_cmp_ge_u32 s2, 160")
    a("s_cbranch_scc1 prep_o")
    a("s_cmp_ge_u32 s2, 80")
    a("s_cselect_b32 s40, 1, 0")
    a("s_cselect_b32 s8, s36, s30")
    a("s_cselect_b32 s9, s37, s31")
    a("s_and_b32 s9, s9, 0xffff")
    a("s_mov_b32 s10, 2457600")
    a("s_mov_b32 s11, 0x20000")
    a("s_mul_i32 s41, s40, 80")
    a("s_sub_u32 s41, s2, s41")
    a("s_mul_i32 s42, s41, 205")
    a("s_lshr_b32 s42, s42, 10")
    a("s_mul_i32 s43, s42, 5")
    a("s_sub_u32 s43, s41, s43")
    a("s_lshl_b32 s44, s43, 2")
    a(f"s_add_u32 s44, s44, s{SW}")
    a("s_mul_i32 s45, s44, 122880")
    a("s_mul_i32 s46, s42, 80")
    a("s_add_u32 s45, s45, s46")
    a("s_add_u32 s46, s45, 15360")
    a(f"v_lshrrev_b32 v6, 2, v{VM}")
    a("v_lshlrev_b32 v6, 3, v6")
    a(f"v_and_b32 v7, 3, v{VM}")
    a("v_add_u32 v6, v6, v7")
    a("v_mul_u32_u24 v6, 3840, v6")
    a(f"v_min_u32 v7, 2, v{VG}")
    a(f"v_lshl_add_u32 v6, v7, 4, v6")
    WA = 64
    for s in range(6):
        for u in range(2):
            a(f"buffer_load_dwordx4 {vr(WA+(s*2+u)*4,4)}, v6, s[8:11], s{45+u} offen offset:{(s>>1)*1280+(s&1)*40}", tag="w")
    TQ = 20
    a("s_cmp_eq_u32 s40, 0")
    a("s_cbranch_scc1 prep_w_id")
    a("s_mov_b32 s48, s38")
    a("s_and_b32 s49, s39, 0xffff")
    a("s_mov_b32 s50, 25600")
    a("s_mov_b32 s51, 0x20000")
    a("s_mul_i32 s52, s42, 1600")
    a("s_add_u32 s53, s52, 800")
    a(f"v_mul_u32_u24 v16, 320, v{VG}")
    a(f"v_lshl_add_u32 v16, v{VM}, 1, v16")
    a(f"v_mov_b32 v17, {OOB}")
    a(f"v_cmp_ge_u32 vcc, 2, v{VG}")
    a("v_cndmask_b32 v36, v17, v16, vcc")
    a(f"v_cmp_ge_u32 vcc, 1, v{VG}")
    a("v_cndmask_b32 v37, v17, v16, vcc")
    a(f"v_cmp_gt_u32 vcc, 4, v{VM}")
    a("v_cndmask_b32 v38, v17, v36, vcc")
    a("v_cndmask_b32 v39, v17, v37, vcc")
    for hh in range(2):
        for p in range(2):
            for s in range(8):
                a(f"buffer_load_ushort v{(192 if s & 1 else TQ)+(hh*2+p)*4+(s>>1)}, v{36+p*2+(s>>2)}, s[48:51], s{52+hh} offen offset:{s*40+p*32}")
    a(f"v_lshrrev_b32 v40, 2, v{VM}")
    a("v_lshlrev_b32 v40, 10, v40")
    a(f"v_and_b32 v41, 3, v{VM}")
    a("v_lshl_add_u32 v40, v41, 4, v40")
    a("v_lshlrev_b32 v41, 4, v41")
    a("v_add_u32 v41, 4096, v41")
    a("v_mov_b32 v42, 64")
    a("v_mov_b32 v43, 64")
    a("s_waitcnt vmcnt(0)")
    for r in range(16): a(f"v_lshl_or_b32 v{TQ+r}, v{192+r}, 16, v{TQ+r}")
    a("s_branch prep_w_go")
    a.label("prep_w_id")
    for hh in range(2):
        for r in range(4):
            a(f"v_mov_b32 v{TQ+hh*8+r}, v{TA+r}")
            a(f"v_mov_b32 v{TQ+hh*8+4+r}, v{TB+r}")
    for p, (b, mu) in enumerate(((40, 42), (41, 43))):
        a(f"v_add_u32 v16, {16*p}, v{VM}")
        a("v_mul_u32_u24 v17, 13, v16")
        a("v_lshrrev_b32 v17, 6, v17")
        a("v_mul_u32_u24 v18, 5, v17")
        a("v_sub_u32 v18, v16, v18")
        a("v_lshlrev_b32 v17, 6, v17")
        a("v_lshl_add_u32 v16, v18, 4, v17")
        a("v_add_u32 v17, 4096, v17")
        a("v_cmp_gt_u32 vcc, 4, v18")
        a(f"v_cndmask_b32 v{b}, v17, v16, vcc")
        a("v_mov_b32 v16, 1024")
        a(f"v_cndmask_b32 v{mu}, 16, v16, vcc")
    a.label("prep_w_go")
    a(f"v_mov_b32 v17, {OOB}")
    a(f"v_cmp_gt_u32 vcc, 4, v{VM}")
    a("v_cndmask_b32 v41, v17, v41, vcc")
    a(f"v_lshlrev_b32 v44, 4, v{VM}")
    a("v_add_u32 v45, 2048, v44")
    a("v_cndmask_b32 v45, v17, v45, vcc")
    a(f"v_lshlrev_b32 v46, 8, v{VG}")
    a(f"v_lshlrev_b32 v47, 7, v{VG}")
    a("s_lshl_b32 s54, s40, 4")
    a("s_add_u32 s54, s54, s42")
    a(f"s_mul_i32 s54, s54, {WQ_TILE}")
    a(f"s_mul_i32 s55, s44, {KA}")
    a("s_add_u32 s55, s55, s54")
    a(f"s_mul_i32 s60, s44, {KB}")
    a("s_add_u32 s60, s60, s54")
    a(f"s_add_u32 s60, s60, {RGB}")
    a(f"s_mov_b32 s56, {ONES}")
    a(f"s_lshl_b32 s57, s{SW}, 2")
    a(f"v_add_u32 v48, s57, v{VG}")
    a("v_mul_u32_u24 v48, 768, v48")
    a(f"v_lshl_add_u32 v48, v{VM}, 2, v48")
    a("s_waitcnt vmcnt(0)")
    for s in range(6):
        D = 112 if s % 2 == 0 else 176
        for p in range(2):
            T = (TQ + ((s & 1) * 2 + p) * 4) if s < 4 else (TA if p == 0 else TB)
            for u in range(2):
                a(f"{MF} {vr(D+(p*2+u)*4,4)}, {vr(WA+(s*2+u)*4,4)}, {vr(T,4)}, 0")
        for p in range(2):
            adr = 50 + p + (s & 1) * 4
            if s < 4:
                a(f"v_mad_u32_u24 v{adr}, v{42+p}, {s}, v{40+p}")
                a(f"v_add_u32 v{adr}, v{adr}, v46")
            elif p == 0:
                a(f"v_add_u32 v{adr}, v44, v46")
                if s == 5: a(f"v_add_u32 v{adr}, 1024, v{adr}")
            else:
                a(f"v_add_u32 v{adr}, v45, v47")
                if s == 5: a(f"v_add_u32 v{adr}, 64, v{adr}")
        for p in range(2):
            PK = 128 + (s * 2 + p) * 4
            adr = 50 + p + (s & 1) * 4
            for u in range(2):
                for h in range(2):
                    a(f"v_cvt_pk_bf16_f32 v{PK+u*2+h}, v{D+(p*2+u)*4+2*h}, v{D+(p*2+u)*4+2*h+1}")
            a(f"buffer_store_dwordx4 {vr(PK,4)}, v{adr}, s[4:7], s{55 if s < 4 else 60} offen")
            cs = 52 + p + (s & 1) * 4
            a(f"v_dot2_f32_bf16 v{cs}, v{PK}, s56, 0")
            for r in range(1, 4):
                a(f"v_dot2_f32_bf16 v{cs}, v{PK+r}, s56, v{cs}")
        a("s_nop 2")
        for p in range(2):
            a(f"ds_write_b32 v48, v{52+p+(s&1)*4} offset:{(s*2+p)*64}")
    a("s_waitcnt lgkmcnt(0)")
    a("s_barrier")
    a(f"s_cmp_eq_u32 s{SW}, 3")
    a("s_cbranch_scc1 prep_exit")
    a("v_lshlrev_b32 v54, 2, v0")
    for i in range(16):
        a(f"ds_read_b32 v{64+i}, v54 offset:{i*768}")
    a("v_lshrrev_b32 v55, 5, v0")
    a(f"v_and_b32 v56, 1, v{VG}")
    a("v_cmp_eq_u32 vcc, 1, v56")
    a("v_cndmask_b32 v57, v40, v41, vcc")
    a("v_cndmask_b32 v58, v42, v43, vcc")
    a("v_mad_u32_u24 v57, v58, v55, v57")
    a(f"v_mov_b32 v60, {OOB}")
    a(f"v_cmp_gt_u32 s[60:61], 4, v{VM}")
    a("s_andn2_b64 s[62:63], vcc, s[60:61]")
    a("v_cndmask_b32 v58, v44, v45, vcc")
    a(f"v_add_u32 v58, {RGB+20*KB-20*KA}, v58")
    a("v_mov_b32 v59, 1024")
    a("v_cndmask_b32 v59, v59, 64, vcc")
    a("v_subrev_u32 v61, 4, v55")
    a("v_mad_u32_u24 v58, v59, v61, v58")
    a("v_cmp_le_u32 s[60:61], 4, v55")
    a("v_cndmask_b32 v57, v57, v58, s[60:61]")
    a("v_cndmask_b32 v57, v57, v60, s[62:63]")
    a("s_and_b64 s[60:61], s[60:61], vcc")
    a("v_mov_b32 v59, 256")
    a("v_mov_b32 v58, 128")
    a("v_cndmask_b32 v59, v59, v58, s[60:61]")
    a("s_lshr_b32 s58, s43, 1")
    a("v_mad_u32_u24 v62, v59, s58, v57")
    a("s_and_b32 s59, s43, 1")
    a("s_lshl_b32 s59, s59, 3")
    a(f"s_add_u32 s59, s59, {20*KA}")
    a("s_add_u32 s59, s59, s54")
    a("s_waitcnt lgkmcnt(0)")
    for i in range(8): a(f"v_add_f32 v{64+i}, v{64+i}, v{72+i}")
    for i in range(4): a(f"v_add_f32 v{64+i}, v{64+i}, v{68+i}")
    for i in range(2): a(f"v_add_f32 v{64+i}, v{64+i}, v{66+i}")
    a("v_add_f32 v64, v64, v65")
    a("v_cvt_pk_bf16_f32 v66, v64, v64")
    a("v_and_b32 v67, 0xffff0000, v66")
    a("v_sub_f32 v64, v64, v67")
    a("v_cvt_pk_bf16_f32 v68, v64, v64")
    a("v_and_b32 v67, 0xffff0000, v68")
    a("v_sub_f32 v64, v64, v67")
    a("v_cvt_pk_bf16_f32 v71, v64, 0")
    a("v_and_b32 v66, 0xffff, v66")
    a("v_or_b32 v70, v66, v67")
    a("buffer_store_dwordx2 v[70:71], v62, s[4:7], s59 offen")
    a("s_cmp_eq_u32 s43, 4")
    a("s_cbranch_scc0 prep_exit")
    for r in range(4): a(f"v_mov_b32 v{72+r}, 0")
    a("buffer_store_dwordx2 v[72:73], v62, s[4:7], s59 offen offset:8")
    a("v_add_u32 v62, v62, v59")
    a("buffer_store_dwordx4 v[72:75], v62, s[4:7], s59 offen")
    a("s_endpgm")
    a.label("prep_o")
    a("s_sub_u32 s40, s2, 160")
    a("s_lshl_b32 s40, s40, 2")
    a(f"s_add_u32 s40, s40, s{SW}")
    a("s_cmp_ge_u32 s40, 40")
    a("s_cselect_b32 s41, 1, 0")
    a("s_cselect_b32 s8, s34, s32")
    a("s_cselect_b32 s9, s35, s33")
    a("s_and_b32 s9, s9, 0xffff")
    a("s_mov_b32 s10, 819200")
    a("s_mov_b32 s11, 0x20000")
    a("s_mul_i32 s42, s41, 40")
    a("s_sub_u32 s42, s40, s42")
    a("s_and_b32 s43, s42, 1")
    a("s_lshr_b32 s42, s42, 1")
    a(f"v_lshrrev_b32 v6, 2, v{VM}")
    a("v_mul_u32_u24 v6, 40, v6")
    a(f"v_and_b32 v7, 3, v{VM}")
    a("v_add3_u32 v6, v6, v7, 16")
    a("s_mul_i32 s44, s42, 40")
    a("s_sub_u32 s45, s42, 16")
    a("s_mul_i32 s45, s45, 160")
    a("s_cmp_lt_u32 s42, 16")
    a("s_cselect_b32 s44, s44, s45")
    a("s_cselect_b64 vcc, -1, 0")
    a(f"v_cndmask_b32 v6, v6, v{VM}, vcc")
    a("v_mul_u32_u24 v6, 1280, v6")
    a(f"v_lshl_add_u32 v6, v{VG}, 4, v6")
    a("s_mul_i32 s44, s44, 1280")
    a("s_mul_i32 s45, s43, 640")
    a("s_add_u32 s44, s44, s45")
    a("s_add_u32 s45, s44, 25600")
    for n in range(10):
        for u in range(2):
            a(f"buffer_load_dwordx4 {vr(64+(n*2+u)*4,4)}, v6, s[8:11], s{44+u} offen offset:{n*64}", tag=("o", n))
    a(f"v_bfe_u32 v16, v{VM}, 2, 1")
    a("v_lshlrev_b32 v16, 10, v16")
    a(f"v_lshrrev_b32 v17, 3, v{VM}")
    a("v_lshl_add_u32 v16, v17, 6, v16")
    a("v_lshl_add_u32 v16, v7, 4, v16")
    a(f"v_lshl_add_u32 v16, v{VG}, 8, v16")
    a(f"s_mul_i32 s46, s41, {WO_L}")
    a("s_mul_i32 s47, s42, 5120")
    a("s_add_u32 s46, s46, s47")
    a(f"s_mul_i32 s47, s43, {4*WO_CG}")
    a("s_add_u32 s46, s46, s47")
    a(f"s_add_u32 s46, s46, {WO_OFF}")
    for q in range(1, 4):
        a(f"s_add_u32 s{46+q}, s46, {q*WO_CG}")
    for q in range(4):
        a(f"s_add_u32 s{50+q}, s{46+q}, 4096")
    for n in range(10):
        a.wait_vm(("o", n))
        Dn = 160 + (n & 1) * 16
        for p in range(2):
            for u in range(2):
                a(f"{MF} {vr(Dn+(p*2+u)*4,4)}, {vr(64+(n*2+u)*4,4)}, {vr(TA if p==0 else TB,4)}, 0")
        q5, c5 = n // 5, n % 5
        for p in range(2):
            PK = 192 + ((n & 1) * 2 + p) * 4
            for u in range(2):
                for h in range(2):
                    a(f"v_cvt_pk_bf16_f32 v{PK+u*2+h}, v{Dn+(p*2+u)*4+2*h}, v{Dn+(p*2+u)*4+2*h+1}")
            if c5 == 2:
                a(f"buffer_store_dwordx4 {vr(PK,4)}, v{VL16}, s[4:7], s{50+2*q5+p} offen")
            else:
                cg = 2 * q5 + (1 if c5 > 2 else 0); pair = c5 if c5 < 2 else c5 - 3
                a(f"buffer_store_dwordx4 {vr(PK,4)}, v16, s[4:7], s{46+cg} offen offset:{pair*2048+p*128}")
    a("s_endpgm")
    a.label("prep_x")
    a.vm_reset()
    a("s_mov_b32 s8, s28")
    a("s_and_b32 s9, s29, 0xffff")
    a("s_mov_b32 s10, 2621440")
    a("s_mov_b32 s11, 0x20000")
    a("s_sub_u32 s40, s2, 180")
    a("s_lshl_b32 s40, s40, 2")
    a(f"s_add_u32 s40, s40, s{SW}")
    a("s_lshr_b32 s41, s40, 1")
    a("s_and_b32 s42, s40, 1")
    a("s_mul_i32 s43, s41, 20480")
    a("s_mul_i32 s44, s42, 640")
    a("s_add_u32 s44, s44, s43")
    a(f"v_mul_u32_u24 v6, 1280, v{VM}")
    a(f"v_lshl_add_u32 v6, v{VG}, 4, v6")
    for n in range(10):
        a(f"buffer_load_dwordx4 {vr(64+n*4,4)}, v6, s[8:11], s44 offen offset:{n*64}", tag=("x", n))
    a("s_mul_i32 s45, s42, 10240")
    a("s_add_u32 s45, s45, s43")
    a(f"s_add_u32 s45, s45, {XF_OFF}")
    a("s_add_u32 s46, s45, 4096")
    a("s_add_u32 s47, s45, 8192")
    a(f"s_mov_b32 s56, {ONES}")
    a("v_mov_b32 v16, 0")
    a("v_mov_b32 v17, 0")
    for n in range(10):
        a.wait_vm(("x", n))
        a(f"buffer_store_dwordx4 {vr(64+n*4,4)}, v{VL16}, s[4:7], s{45+n//4} offen offset:{(n%4)*1024}")
        for r in range(4):
            a(f"v_dot2_f32_bf16 v{16+(r&1)}, v{64+n*4+r}, s56, v{16+(r&1)}")
    a("s_nop 2")
    a("v_add_f32 v16, v16, v17")
    xreduce_add(a, 16, 17)
    a(f"v_mul_f32 v18, {f2u(-1.0/320)}, v16")
    for i in range(4): a(f"v_mov_b32 v{20+i}, 0")
    for i in range(40):
        t = 24 + (i & 3) * 2
        a(f"v_lshlrev_b32 v{t}, 16, v{64+i}")
        a(f"v_and_b32 v{t+1}, 0xffff0000, v{64+i}")
        a(f"v_pk_add_f32 {vr(t,2)}, {vr(t,2)}, v[18:19] op_sel_hi:[1,0]")
        a(f"v_pk_fma_f32 {vr(20+(i&1)*2,2)}, {vr(t,2)}, {vr(t,2)}, {vr(20+(i&1)*2,2)}")
    a("v_pk_add_f32 v[20:21], v[20:21], v[22:23]")
    a("v_add_f32 v20, v20, v21")
    xreduce_add(a, 20, 21)
    a(f"v_mul_f32 v22, {f2u(0.25)}, v16")
    a(f"v_mul_f32 v23, {f2u(0.25)}, v20")
    a(f"v_lshlrev_b32 v6, 6, v{VM}")
    a(f"v_lshl_add_u32 v6, v{VG}, 3, v6")
    a("s_lshl_b32 s48, s41, 10")
    a("s_lshl_b32 s49, s42, 5")
    a("s_add_u32 s48, s48, s49")
    a(f"s_add_u32 s48, s48, {ST_OFF}")
    a("buffer_store_dwordx2 v[22:23], v6, s[4:7], s48 offen")
    a("s_endpgm")
    a.label("prep_z")
    a("s_sub_u32 s40, s2, 244")
    a("s_lshl_b32 s40, s40, 12")
    a(f"s_add_u32 s40, s40, {FLG_OFF}")
    a("v_lshlrev_b32 v6, 4, v0")
    for r in range(4): a(f"v_mov_b32 v{8+r}, 0")
    a("buffer_store_dwordx4 v[8:11], v6, s[4:7], s40 offen")
    a.label("prep_exit")
    a("s_endpgm")
    return name

def handoff(a, s_sig, voff, s_poll, st=None):
    top = a.newlabel("poll"); out = a.newlabel("seen")
    a("v_mov_b32 v12, 0")
    a("v_mov_b32 v13, 1")
    a("s_mov_b32 s62, 0")
    a(f"s_cmp_eq_u32 s{SW}, 0")
    a("s_waitcnt vmcnt(0) lgkmcnt(0)")
    a("s_barrier")
    a(f"s_cbranch_scc0 {out}")
    a("s_mov_b64 exec, 1")
    a(f"buffer_atomic_add v13, v12, s[4:7], s{s_sig} offen sc1")
    a("s_mov_b64 exec, -1")
    if st is not None: stamp(a, st)
    a.label(top)
    a(f"buffer_load_dword v15, v{voff}, s[4:7], s{s_poll} offen sc1")
    a("s_add_u32 s62, s62, 1")
    a("s_waitcnt vmcnt(0)")
    a("v_cmp_gt_u32 vcc, 16, v15")
    a("s_cmp_lt_u32 s62, 0x20000")
    a("s_cselect_b64 vcc, vcc, 0")
    a("s_nop 4")
    a(f"s_cbranch_vccnz {top}")
    a.label(out)
    a("s_barrier")
    a.vm_reset()

def dma_batch(base, n, ssrc, stmp, per_wave, tag="dma"):
    out = []
    for i in range(n):
        pre = []
        if i == 0:
            pre += [f"s_mul_i32 s{stmp+1}, s{SW}, {per_wave}", f"s_add_u32 s{stmp+2}, s{stmp+1}, s{ssrc}"]
        if i % 4 == 0:
            pre += [f"s_add_u32 m0, s{stmp+1}, {base+i*1024}", f"s_add_u32 s{stmp}, s{stmp+2}, {base+i*1024}"]
        out.append(pre + [(f"buffer_load_dwordx4 v{VL16}, s[4:7], s{stmp} offen offset:{(i%4)*1024} lds", tag)])
    return out
def b3_batch(ssrc, stmp=90, tag="dma"): return dma_batch(RED, 15, ssrc, stmp, 15360, tag)

ACC = 64; HK = 128; HV = 52; WFA = 140; HWF = 200; STR = 224
XSA = 180
RSM = (28, 30, 32); RS4 = (36, 40, 44)
def acc(blk, rb): return ACC + (blk * 2 + rb) * 4
def setB(ks): return (224, 200, 212)[ks % 3]

def qkv_setup(a, isA):
    a(f"s_mul_i32 s26, s{SJ}, {WQ_TILE}")
    a(f"s_add_u32 s27, s26, s{P_WN}")
    a(f"s_add_u32 s26, s26, s{P_WQ}")
    a(f"s_lshl_b32 s29, s{SRG}, 3")
    a(f"s_lshl_b32 s30, s{SW}, 1")
    a("s_add_u32 s28, s30, s29")
    a("s_mul_i32 s30, s28, 20480")
    a(f"s_add_u32 s30, s30, s{P_X}")
    a(f"v_add_u32 v{VL16B}, 20480, v{VL16}")
    a(f"v_mov_b32 v{VLA}, v{VL16}")
    a(f"v_add_u32 v{VLB}, {RGB}, v{VL16}")
    a(f"v_lshrrev_b32 v12, 2, v{VM}")
    a("v_lshlrev_b32 v12, 1, v12")
    a(f"v_and_b32 v13, 1, v{VM}")
    a("v_add_u32 v12, v12, v13")
    a(f"v_lshl_add_u32 v12, v{VG}, 3, v12")
    a("v_lshlrev_b32 v12, 4, v12")
    a(f"v_add_u32 v{VLX}, {RGB+2048}, v12")
    a("s_lshl_b32 s37, s28, 10")
    a(f"s_add_u32 s37, s37, s{P_ST}")
    a(f"v_lshlrev_b32 v48, 6, v{VL}")
    a("v_mov_b32 v49, 256")
    a(f"s_lshl_b32 s38, s{SL}, 4")
    a(f"s_add_u32 s38, s38, s{SRG}")
    a("s_lshl_b32 s38, s38, 8")
    a(f"s_add_u32 s38, s38, {FX_OFF-256}")
    if isA:
        a("s_mul_i32 s31, s29, 20480")
        a(f"s_add_u32 s31, s31, s{P_X}")
        a("s_sub_u32 s31, s31, 20480")
        a(f"s_lshl_b32 s32, s{SW}, 10")
        a("s_add_u32 s31, s31, s32")
        a(f"s_cmp_eq_u32 s{SRG}, 0")
        a(f"s_cselect_b32 s31, {OOB}, s31")
        a("s_cselect_b64 s[40:41], 0, -1")
        a(f"s_lshl_b32 s32, s{SW}, 11")
        a("s_add_u32 s32, s32, 3072")
        a("s_sub_u32 s37, s37, s32")
        a("v_add_u32 v12, s32, v48")
        a(f"v_mov_b32 v13, {OOB}")
        a("s_and_b32 s59, s41, 0xffff")
        a("s_mov_b32 s58, 0")
        a("v_cndmask_b32 v13, v13, v48, s[58:59]")
        a(f"v_cmp_gt_u32 vcc, 32, v{VL}")
        a("v_cndmask_b32 v48, v13, v12, vcc")
        a("s_mov_b32 s40, 0")
        a("v_cndmask_b32 v49, v49, 0, s[40:41]")
        a(f"s_mul_i32 s32, s{SW}, {KA}")
        a("s_add_u32 s32, s32, 2048")
        a(f"v_add_u32 v{VHA}, s32, v{VL16}")
        a(f"s_mul_i32 s32, s{SW}, {KB}")
        a(f"v_add_u32 v{VHB}, s32, v{VLB}")
        a(f"v_add_u32 v{VHX}, s32, v{VLX}")
    else:
        a(f"v_and_b32 v48, {31*64}, v48")
    a(f"s_lshr_b32 s60, s{SJ}, 1")
    a(f"s_mul_i32 s60, s60, {WO_CG}")
    a(f"s_mul_i32 s61, s{SW}, 25600")
    a("s_add_u32 s61, s61, s60")
    a(f"s_add_u32 s61, s61, s{P_WO}")
    a(f"v_add_u32 v50, 4096, v{VL16}")
    a(f"v_mov_b32 v51, {ONES}")
    o_store_setup(a)

def stats_code(isA):
    s = STR
    c = []
    c.append(f"v_add_f32 v12, v{s}, v{s+2}")
    c.append(f"v_add_f32 v13, v{s+1}, v{s+3}")
    for t in range(2, 8):
        c.append(f"v_add_f32 v12, v12, v{s+2*t}")
        c.append(f"v_add_f32 v13, v13, v{s+2*t+1}")
    c.append(f"v_mul_f32 v12, {f2u(1.0/640)}, v12")
    c.append(f"v_mul_f32 v15, {f2u(-80.0)}, v12")
    for t in range(8): c.append(f"v_add_f32 v{s+2*t}, v{s+2*t}, v15")
    c.append(f"v_mul_f32 v15, v{s}, v{s}")
    for t in range(1, 8): c.append(f"v_fmac_f32 v15, v{s+2*t}, v{s+2*t}")
    c.append(f"v_mul_f32 v15, {f2u(1.0/80)}, v15")
    c.append("v_add_f32 v13, v13, v15")
    c.append(f"v_mul_f32 v13, {f2u(1.0/640)}, v13")
    c.append("v_cvt_pk_bf16_f32 v13, v13, v13")
    c.append("v_and_b32 v13, 0xffff0000, v13")
    c.append(f"v_add_f32 v13, {f2u(1e-5)}, v13")
    c.append("v_cvt_pk_bf16_f32 v13, v13, v13")
    c.append("v_and_b32 v13, 0xffff0000, v13")
    c.append("v_sqrt_f32 v13, v13")
    c.append("v_cvt_pk_bf16_f32 v12, -v12, -v12")
    c.append("v_cvt_pk_bf16_f32 v13, v13, v13")
    c.append("v_and_b32 v13, 0xffff0000, v13")
    c.append("v_rcp_f32 v13, v13")
    c.append(f"v_lshlrev_b32 v{s}, 2, v{VM}")
    c.append(f"v_lshlrev_b32 v{s+1}, 4, v{VG}")
    n = 3 if isA else 2
    for k in range(n):
        c.append(f"ds_bpermute_b32 v{s+2+k}, v{s}, v12 offset:{64*k}")
        c.append(f"ds_bpermute_b32 v{RSM[k]}, v{s}, v13 offset:{64*k}")
        for r in range(4):
            c.append(f"ds_bpermute_b32 v{RS4[k]+r}, v{s+1}, v13 offset:{64*k+4*r}")
    c.append("WAITL")
    if isA:
        c.append([f"s_cmp_eq_u32 s{SW}, 0", "s_cselect_b64 s[40:41], -1, 0", f"v_cndmask_b32 v{s+4}, 0, v{s+4}, s[40:41]"])
    for k in range(n):
        for r in range(4): c.append(f"v_accvgpr_write_b32 a{XSA+4*k+r}, v{s+2+k}")
    return c

def x_loads(ks, isA):
    g = []
    for rb in range(2):
        pre = [f"s_add_u32 s34, s30, {(ks//4)*4096}"] if (ks % 4 == 0 and rb == 0) else []
        g.append(pre + [(f"buffer_load_dwordx4 {ar((ks*2+rb)*4,4)}, v{VL16B if rb else VL16}, s[4:7], s34 offen offset:{(ks%4)*1024} {SC}", ("x", ks))])
    if isA and ks % 4 == 1:
        p = ks // 4
        g.append([f"s_add_u32 s35, s31, {p*4096}", (f"buffer_load_dwordx4 {ar(160+p*4,4)}, v{VL16}, s[4:7], s35 offen {SC}", ("x", ks))])
    return g
def st_loads():
    return [[(f"buffer_load_dwordx4 {vr(STR+4*i,4)}, v48, s[4:7], s37 offen offset:{16*i} {SC}", "st")] for i in range(4)]
def readsA(ks):
    o = (ks % 12) * KA; st = WFA + (ks % 3) * 20
    pre = [f"v_add_u32 v{VLA}, 61440, v{VLA}"] if ks == 12 else []
    return pre + [(f"ds_read_b128 {vr(st+b*4,4)}, v{VLA} offset:{o+b*1024}", ("a", ks)) for b in range(5)]
def readsB(ks, st=None, tag=None):
    o = ks * KB; st = setB(ks) if st is None else st; tag = tag or ("b", ks)
    return [(f"ds_read_b128 {vr(st,4)}, v{VLB} offset:{o}", tag), (f"ds_read_b128 {vr(st+4,4)}, v{VLB} offset:{o+1024}", tag), (f"ds_read_b128 {vr(st+8,4)}, v{VLX} offset:{o}", tag)]
def hreadsA(p):
    o = (p % 3) * 4 * KA
    pre = [f"v_add_u32 v{VHA}, 61440, v{VHA}"] if p == 3 else []
    return pre + [(f"ds_read_b128 {vr(HWF+4*t,4)}, v{VHA} offset:{o+t*1024}", ("ha", p)) for t in range(3)]
def hreadsB(p):
    o = p * 4 * KB; st = HWF + 12
    if p == 5: return readsB(20, st, ("hb", 5))
    return [(f"ds_read_b128 {vr(st,4)}, v{VHB} offset:{o}", ("hb", p)), (f"ds_read_b128 {vr(st+4,4)}, v{VHB} offset:{o+1024}", ("hb", p)), (f"ds_read_b128 {vr(st+8,4)}, v{VHX} offset:{o}", ("hb", p))]
HVSTEP = {12: 0, 14: 1, 16: 2, 18: 3, 19: 4, 20: 5}

def interleave(mf, extra):
    out = []
    extra = list(extra)
    for i, m in enumerate(mf):
        out.append(m)
        k = 1 if len(extra) <= len(mf) - i else 2
        out += extra[:k]; extra = extra[k:]
    return out + extra

def pass1(a, isA, first, mid=None):
    sched = {k: [] for k in range(-1, 21)}
    if first:
        b3 = b3_batch(26, 90, ("w", 3))
        for R in range(5):
            at = -1 if R < 2 else (R - 2) * 4
            items = []
            if R == 2: items += b3[:8]
            if R == 3: items += b3[8:]
            w = dma_batch(R * 4 * KA, 5, 26, 93, 5120, ("w", R))
            xs = []
            for k in range(4 * R, 4 * R + 4): xs += x_loads(k, isA)
            if R == 0: xs += st_loads()
            items = (w + xs + items) if R == 2 else (items + w + xs)
            if at == -1: sched[-1] += items
            else:
                n = len(items)
                for i, it in enumerate(items): sched[at + (i * 4) // n].append(it)
    else:
        for x in readsA(0) + readsA(1): a.emit_item(x)
        for k in range(20):
            sched[max(-1, k - LA)] += x_loads(k, isA)
            if k == 1: sched[-1] += st_loads()
    for g in sched[-1]: a.emit_item(g)
    if mid: mid()
    if first:
        a.wait_vm(("w", 0)); a("s_barrier")
        for x in readsA(0) + readsA(1): a.emit_item(x)
    stamp(a, 2)
    main = []
    for ks in range(21):
        vt = ("x", ks) if ks < 20 else None
        lt = ("a", ks)
        if first and (ks + 2) % 4 == 0 and ks + 2 < 20:
            R = (ks + 2) // 4
            main.append(lambda R=R, lt=lt: a.wait_str(("w", R), lt)); main.append("s_barrier")
            if R < 2 or True: main.append(lambda vt=vt: a.wait_str(vt))
        elif ks == 20:
            main.append("s_waitcnt lgkmcnt(0)"); main.append("s_barrier")
        else:
            main.append(lambda vt=vt, lt=lt: a.wait_str(vt, lt))
            if ks == 10: main.append("s_barrier")
        extra = []
        if ks + 2 <= 20: extra += readsA(ks + 2)
        if ks == 20: extra += readsB(0) + readsB(1)
        st = WFA + (ks % 3) * 20
        mf = []
        if isA and ks in HVSTEP:
            q = HVSTEP[ks]
            X = ar(160 + q * 4, 4) if q < 5 else ar(XSA + 8, 4)
            main.append(lambda q=q: a.wait_str(None, ("hb", q)))
            for t in range(3):
                mf.append(f"{MF} {vr(HV+t*4,4)}, {X}, {vr(HWF+12+t*4,4)}, {'0' if q == 0 else vr(HV+t*4,4)}")
        if isA and ks % 4 == 3:
            p = ks // 4
            main.append(lambda p=p: a.wait_str(None, ("ha", p)))
            for t in range(3):
                mf.append(f"{MF} {vr(HK+t*4,4)}, {vr(HWF+t*4,4)}, {ar(160+p*4,4)}, {'0' if p == 0 else vr(HK+t*4,4)}")
        nh = len(mf)
        for b in range(5):
            for rb in range(2):
                X = ar((ks * 2 + rb) * 4, 4) if ks < 20 else ar(XSA + rb * 4, 4)
                mf.append(f"{MF} {vr(acc(b,rb),4)}, {vr(st+b*4,4)}, {X}, {'0' if ks == 0 else vr(acc(b,rb),4)}")
        if isA and ks == 20:
            for t in range(3):
                mf.append(f"{MF} {vr(HK+t*4,4)}, {vr(st+(2+t)*4,4)}, {ar(XSA+8,4)}, {vr(HK+t*4,4)}")
        if isA and ks % 4 == 2 and ks < 20: extra += hreadsA(ks // 4)
        if isA and ks + 1 in HVSTEP: extra += hreadsB(HVSTEP[ks + 1])
        extra += sched[ks]
        main += mf[:nh] + interleave(mf[nh:], extra)
    fill = [("HOLD", 32)] + stats_code(isA)
    a.merge(main, fill, slots=SLOTS)
    stamp(a, 5)

def pass2(a, isA, filler):
    main = []
    b1 = dma_batch(0, 16, 27, 90, 16384)
    wo = []
    for i in range(25):
        n, b = divmod(i, 5)
        pre = [f"s_add_u32 s36, s61, {n*5120}"] if b == 0 else []
        if b < 4: wo.append(pre + [(f"buffer_load_dwordx4 {ar(i*4,4)}, v{VL16}, s[4:7], s36 offen offset:{b*1024}", "wo")])
        else: wo.append([(f"buffer_load_dwordx4 {ar(i*4,4)}, v50, s[4:7], s36 offen", "wo")])
    for ks in range(21):
        main.append(lambda ks=ks: a.wait_str(None, ("b", ks)))
        extra = []
        if ks + 2 <= 20: extra += readsB(ks + 2)
        if ks < 16: extra.append(b1[ks])
        if ks >= 1: extra += wo[2 * (ks - 1): 2 * ks]
        st = setB(ks)
        mf = []
        for b in range(3):
            for rb in range(2):
                X = ar((ks * 2 + rb) * 4, 4) if ks < 20 else ar(XSA + rb * 4, 4)
                mf.append(f"{MF} {vr(acc(5+b,rb),4)}, {X}, {vr(st+b*4,4)}, {'0' if ks == 0 else vr(acc(5+b,rb),4)}")
        main += interleave(mf, extra)
    if 'nofill' in DBG: filler = [f for f in filler if f == 'BAR']
    a.merge(main, filler, slots=SLOTS)
    stamp(a, 6)

def mul_b(tile, rs, n=2):
    return [f"v_pk_mul_f32 {vr(tile+2*i,2)}, {vr(tile+2*i,2)}, {vr(rs,2)} op_sel_hi:[1,0]" for i in range(n)]
def mul_n(tile, rs4):
    return [f"v_pk_mul_f32 {vr(tile+2*i,2)}, {vr(tile+2*i,2)}, {vr(rs4+2*i,2)}" for i in range(2)]
def pack2(dst, tile):
    return [f"v_cvt_pk_bf16_f32 v{dst}, v{tile}, v{tile+1}", f"v_cvt_pk_bf16_f32 v{dst+1}, v{tile+2}, v{tile+3}"]
def pack_sw(dst, tile, e):
    return pack2(dst, tile) + [f"v_cvt_pk_bf16_f32 v{dst+2}, v{e}, 0", f"v_mov_b32 v{dst+3}, 0"]

def o_store_setup(a):
    a("s_mul_i32 s44, s28, 20480")
    a(f"s_add_u32 s44, s44, s{P_O}")
    a(f"s_lshr_b32 s46, s{SJ}, 2")
    a("s_add_u32 s46, s46, 16")
    a("s_lshl_b32 s46, s46, 10")
    a(f"s_and_b32 s47, s{SJ}, 3")
    a("s_lshl_b32 s47, s47, 8")
    a("s_add_u32 s46, s46, s47")
    a("s_add_u32 s46, s46, s44")
    a("s_add_u32 s47, s46, 20480")
    a(f"s_lshl_b32 s45, s{SJ}, 10")
    a("s_add_u32 s44, s44, s45")
    a("s_add_u32 s45, s44, 20480")
    a(f"v_lshlrev_b32 v{VOX}, 4, v{VM}")
    a(f"v_lshl_add_u32 v{VOX}, v{VG}, 2, v{VOX}")
    a("s_mov_b32 s48, -1")
    a("s_mov_b32 s49, 0")
    a("s_mov_b32 s50, 0x33333333")
    a("s_mov_b32 s51, 0x33333333")
    a(f"s_lshl_b32 s42, s{SL}, 4")
    a(f"s_add_u32 s42, s42, s{SRG}")
    a("s_lshl_b32 s42, s42, 8")
    a(f"s_add_u32 s{S_FO}, s42, {FO_OFF}")

def o_finish(a, rb, O0, O1, X0, X1, d0, d1, inv, out):
    a(f"v_rcp_f32 v{inv}, v{d0}")
    a(f"v_rcp_f32 v{inv+2}, v{d1}")
    if X0 != X1:
        a(f"v_cndmask_b32 v{X0+2}, v{X1+2}, v{X0+2}, s[48:49]")
        a(f"v_cndmask_b32 v{X0+3}, v{X1+3}, v{X0+3}, s[48:49]")
    for h, O in enumerate((O0, O1)):
        for x in mul_b(O, inv + 2 * h): a(x)
    a(f"v_cndmask_b32 v{inv}, v{inv+2}, v{inv}, s[48:49]")
    for h, O in enumerate((O0, O1)):
        for x in pack2(out + 2 * h, O): a(x)
    a(f"v_pk_mul_f32 {vr(X0+2,2)}, {vr(X0+2,2)}, {vr(inv,2)} op_sel_hi:[1,0]")
    a(f"buffer_store_dwordx4 {vr(out,4)}, v{VL16}, s[4:7], s{44+rb} offen {SC}")
    a(f"v_cvt_pk_bf16_f32 v{out+4}, v{X0+2}, v{X0+3}")
    a(f"buffer_store_dword v{out+4}, v{VOX}, s[4:7], s{46+rb} offen {SC}")

BP, BC, BP0 = 16, 20, 24
def gen_qa(a, first):
    stamp(a, 0)
    qkv_setup(a, True)
    def consts():
        if first: qb_consts(a)
        a(f"v_lshlrev_b32 v12, 2, v{VG}")
        a(f"v_sub_u32 v12, v{VM}, v12")
        a(f"v_mov_b32 v15, {f2u(-1e30)}")
        a(f"s_or_b32 s52, s{SRG}, s{SW}")
        a("s_cmp_eq_u32 s52, 0")
        a("s_cselect_b64 s[52:53], -1, 0")
        for r in range(4):
            for base, add, m in ((BC, 0, "vcc"), (BP, 16, "s[56:57]")):
                a(f"v_add_u32 v{52+(add>>4)}, {add-r}, v12")
                a(f"v_alignbit_b32 v{52+(add>>4)}, v{52+(add>>4)}, v{52+(add>>4)}, 1")
                a(f"v_cmp_ge_u32 {m}, 7, v{52+(add>>4)}")
            a(f"v_cndmask_b32 v{BC+r}, v15, 0, vcc")
            a(f"v_cndmask_b32 v{BP+r}, v15, 0, s[56:57]")
            a(f"v_cndmask_b32 v{BP0+r}, v{BP+r}, v15, s[52:53]")
        c = f2u(20 ** -0.5 * LOG2E)
        a(f"s_mov_b32 s54, {c}")
        a(f"s_mov_b32 s55, {c}")
        a(f"s_cmp_eq_u32 s{SW}, 0")
        a("s_cselect_b64 s[56:57], 0, -1")
    if not first:
        consts()
        handoff(a, S_FX, 49, 38, 7)
    stamp(a, 1)
    pass1(a, True, first, consts if first else None)
    QOP, KOP, VS, T, HVP = 140, 156, 200, 180, 192
    qop = lambda rb, h: QOP + (rb * 2 + h) * 4
    kop = lambda pos, h: KOP + (pos * 2 + h) * 4
    vs = lambda b, pos: VS + b * 6 + pos * 2
    KX = EXA; HKX = EXA + 8192; HVX = EXA + 20480; VX = EXA + 36864
    F = []
    F.append([f"s_mul_i32 s58, s{SW}, 3072", f"s_add_u32 s58, s58, {HKX}", f"v_add_u32 v48, s58, v{VL16}"])
    F.append([f"s_lshl_b32 s58, s{SW}, 11", f"s_add_u32 s58, s58, {KX-2048}", f"v_add_u32 v49, s58, v{VL16}"])
    F += [f"ds_write_b128 v48, {vr(HV+4*t,4)} offset:{HVX-HKX+t*1024}" for t in range(3)]
    F.append(f"v_add_u32 v12, {HKX}, v{VL16}")
    F.append([x for rb in (1, 0) for b in (4, 2, 3, 0, 1) for x in mul_b(acc(b, rb), RSM[rb])])
    F += [f"ds_write_b128 v48, {vr(HK+4*t,4)} offset:{t*1024}" for t in range(3)]
    for h in range(2): F += pack_sw(kop(2, h), acc(2 + h, 1), acc(4, 1) + 2 + h)
    F += [f"ds_write_b128 v49, {vr(kop(2,h),4)} offset:{2048+h*1024}" for h in range(2)]
    for h in range(2): F += pack_sw(kop(1, h), acc(2 + h, 0), acc(4, 0) + 2 + h)
    for rb in (1, 0):
        for h in range(2): F += pack_sw(qop(rb, h), acc(h, rb), acc(4, rb) + h)
    F += ["BAR"]
    S = 64; MX = 80
    def sm_mf(rb):
        c = []
        for h in range(2):
            c.append(f"{MF} {vr(S+h*8,4)}, {vr(kop(rb,h),4)}, {vr(qop(rb,h),4)}, 0")
            c.append(f"{MF} {vr(S+h*8+4,4)}, {vr(kop(rb+1,h),4)}, {vr(qop(rb,h),4)}, 0")
        return c
    def sm_fma(bprev):
        return [f"v_pk_fma_f32 {vr(S+h*8+2*i,2)}, {vr(S+h*8+2*i,2)}, s[54:55], {vr((bprev if i < 2 else BC) + (i & 1) * 2,2)}" for h in range(2) for i in range(4)]
    def sm_max():
        c = []
        for h in range(2):
            t = S + h * 8
            c += [f"v_max3_f32 v{MX+2*h}, v{t}, v{t+1}, v{t+2}", f"v_max3_f32 v{84+h}, v{t+3}, v{t+4}, v{t+5}"]
        for h in range(2): c.append(f"v_max3_f32 v{MX+2*h}, v{MX+2*h}, v{S+h*8+6}, v{S+h*8+7}")
        for h in range(2): c.append(f"v_max_f32 v{MX+2*h}, v{MX+2*h}, v{84+h}")
        c += [f"v_permlane32_swap_b32 v{MX}, v{MX+2}", f"v_max_f32 v{MX}, v{MX}, v{MX+2}", f"v_mov_b32 v{MX+2}, v{MX}",
              f"v_permlane16_swap_b32 v{MX}, v{MX+2}", f"v_max_f32 v{MX}, v{MX}, v{MX+2}", f"v_mov_b32 v{MX+2}, v{MX}",
              f"v_permlane32_swap_b32 v{MX}, v{MX+2}"]
        return c
    def sm_sub():
        return [f"v_pk_add_f32 {vr(S+h*8+2*i,2)}, {vr(S+h*8+2*i,2)}, {vr(MX+2*h,2)} op_sel_hi:[1,0] neg_lo:[0,1] neg_hi:[0,1]" for h in range(2) for i in range(4)]
    def sm_exp(rb):
        c = [f"v_exp_f32 v{S+i}, v{S+i}" for i in range(16)]
        return c + [f"v_cvt_pk_bf16_f32 v{88+rb*8+i}, v{S+2*i}, v{S+2*i+1}" for i in range(8)]
    rd = lambda dst, off, p: [f"ds_read_b128 {vr(dst+4*t,4)}, v12 offset:{off+p*3072+t*1024}" for t in range(3)]
    add = lambda dst: [f"v_pk_add_f32 {vr(dst+2*i,2)}, {vr(dst+2*i,2)}, {vr(T+2*i,2)}" for i in range(6)]
    oV = HVX - HKX
    F += sm_mf(1) + rd(HK, 0, 0) + rd(T, 0, 1) + ["WAITL"]
    F.append(sm_fma(BP) + add(HK))
    F += rd(T, 0, 2) + sm_max() + ["WAITL"]
    F.append(sm_sub() + add(HK))
    e1 = sm_exp(1)
    F += rd(T, 0, 3) + rd(HV, oV, 0) + e1[:8] + ["WAITL"]
    F.append(add(HK) + mul_b(HK, RSM[2], 4) + mul_b(HK + 10, RSM[2], 1))
    F += rd(T, oV, 1)
    for h in range(2): F += pack_sw(kop(0, h), HK + 4 * h, HK + 10 + h)
    F.append(["s_mov_b64 exec, s[56:57]"] + [f"ds_read_b128 {vr(kop(0,h),4)}, v49 offset:{h*1024}" for h in range(2)] + ["s_mov_b64 exec, -1"])
    F += e1[8:] + ["WAITL"]
    F += sm_mf(0)
    F.append(add(HV))
    F += rd(T, oV, 2)
    F.append([f"s_mul_i32 s58, s{SW}, 1536", f"s_add_u32 s58, s58, {VX-1536}", f"v_lshl_add_u32 v49, v{VL}, 3, s58"])
    F += ["WAITL"]
    F.append(sm_fma(BP0) + add(HV))
    F += rd(T, oV, 3) + sm_max() + ["WAITL"]
    F.append(sm_sub() + add(HV) + [x for b in range(3) for x in mul_n(HV + 4 * b, RS4[2])])
    F += sm_exp(0)
    for b in range(3): F += pack2(HVP + 2 * b, HV + 4 * b)
    for r in range(2): F.append(f"v_cndmask_b32 v{HVP+4+r}, v{HVP+4+r}, v51, s[50:51]")
    pass2(a, True, F)
    for rb in (1, 0):
        for b in range(3):
            for x in mul_n(acc(5 + b, rb), RS4[rb]): a(x)
    for b in range(3):
        for x in pack2(vs(b, 2), acc(5 + b, 1)): a(x)
    for r in range(2): a(f"v_cndmask_b32 v{vs(2,2)+r}, v{vs(2,2)+r}, v51, s[50:51]")
    for b in range(3): a(f"ds_write_b64 v49, {vr(vs(b,2),2)} offset:{1536+b*512}")
    for b in range(3):
        for x in pack2(vs(b, 1), acc(5 + b, 0)): a(x)
    for r in range(2): a(f"v_cndmask_b32 v{vs(2,1)+r}, v{vs(2,1)+r}, v51, s[50:51]")
    def pv(rb, O):
        for h in range(2): a(f"{MF} {vr(O+8+h*4,4)}, {vr(vs(2,rb),4)}, {vr(88+rb*8+h*4,4)}, 0")
        for h in range(2): a(f"{MF} {vr(O+h*4,4)}, {vr(vs(h,rb),4)}, {vr(88+rb*8+h*4,4)}, 0")
    for b in range(3):
        for r in range(2): a(f"v_mov_b32 v{vs(b,0)+r}, v{HVP+2*b+r}")
    a("s_waitcnt lgkmcnt(0)")
    a("s_barrier")
    a("s_mov_b64 exec, s[56:57]")
    for b in range(3): a(f"ds_read_b64 {vr(vs(b,0),2)}, v49 offset:{b*512}")
    a("s_mov_b64 exec, -1")
    pv(1, 64)
    a("s_waitcnt lgkmcnt(0)")
    pv(0, 116)
    o_finish(a, 1, 64, 68, 72, 76, 72, 76, 104, 108)
    o_finish(a, 0, 116, 120, 124, 128, 124, 128, 132, 136)
    stamp_flush(a, 8, 0)

PH = 140; SEL = 16
def chunk_decode(a, c, u, g, z):
    a(f"v_subrev_u32 v{z}, 320, v{c}")
    a(f"v_and_b32 v{z}, 0xff, v{z}")
    a(f"v_mul_u32_u24 v{u}, 205, v{z}")
    a(f"v_lshrrev_b32 v{u}, 12, v{u}")
    a(f"v_mul_u32_u24 v{g}, 20, v{u}")
    a(f"v_sub_u32 v{z}, v{z}, v{g}")
    a(f"v_mul_u32_u24 v{g}, 13, v{z}")
    a(f"v_lshrrev_b32 v{g}, 6, v{g}")
    a(f"v_mul_u32_u24 v60, 5, v{g}")
    a(f"v_sub_u32 v{z}, v{z}, v60")

QBC = 192
def qb_consts(a):
    a(f"v_and_b32 v12, 7, v{VM}")
    a(f"v_lshrrev_b32 v13, 3, v{VM}")
    a("v_add_u32 v13, 2, v13")
    onehot(a, SEL, 12, lambda: a(f"v_cmp_eq_u32 vcc, v13, v{VG}"), 52)
    KVB = EXA
    a("v_add_u32 v56, 256, v0")
    chunk_decode(a, 56, 57, 58, 59)
    a("v_lshrrev_b32 v60, 1, v58")
    a("v_lshl_add_u32 v60, v60, 2, v59")
    a("v_subrev_u32 v60, 1, v60")
    a("v_lshrrev_b32 v61, 1, v60")
    a("v_and_b32 v60, 1, v60")
    a("v_lshl_add_u32 v60, v61, 2, v60")
    a("v_add_u32 v60, 2, v60")
    a("v_cmp_eq_u32 s[58:59], 0, v59")
    a("v_cndmask_b32 v60, v60, 0, s[58:59]")
    a("v_lshl_add_u32 v60, v58, 4, v60")
    a("v_lshl_add_u32 v60, v57, 6, v60")
    a("v_add_u32 v60, 320, v60")
    a("v_cmp_gt_u32 vcc, 320, v56")
    a("v_cndmask_b32 v60, v60, v56, vcc")
    a("v_mov_b32 v61, 420")
    a("v_cmp_gt_u32 s[56:57], v61, v56")
    a("v_cndmask_b32 v60, 0, v60, s[56:57]")
    a("v_lshlrev_b32 v20, 4, v60")
    a(f"v_add_u32 v20, {EXA}, v20")
    a("v_lshlrev_b32 v21, 4, v0")
    a("v_add_u32 v22, 4096, v21")
    a(f"v_mov_b32 v61, {OOB}")
    a("v_cndmask_b32 v22, v61, v22, s[56:57]")
    def maddr(dst, c):
        a(f"v_bfe_u32 v60, v{c}, 5, 1")
        a("v_mul_u32_u24 v60, 21, v60")
        a(f"v_add_u32 v60, v60, v{VM}")
        a("v_mul_u32_u24 v60, 80, v60")
        a(f"v_lshrrev_b32 v61, 6, v{c}")
        a("v_lshl_add_u32 v60, v61, 4, v60")
        a(f"v_bfe_u32 v61, v{c}, 4, 1")
        a(f"v_lshl_add_u32 v{dst}, v61, 3, v60")
    maddr(23, 0); maddr(24, 56)
    a("v_add_u32 v60, 15, v59")
    a("v_cndmask_b32 v60, v60, 20, s[58:59]")
    a("v_lshrrev_b32 v61, 1, v58")
    a("v_mul_u32_u24 v61, 21, v61")
    a("v_add_u32 v60, v60, v61")
    a("v_mul_u32_u24 v60, 80, v60")
    a("v_lshl_add_u32 v60, v57, 4, v60")
    a("v_and_b32 v61, 1, v58")
    a("v_lshl_add_u32 v60, v61, 3, v60")
    a("v_cndmask_b32 v24, v60, v24, vcc")
    a("v_mov_b32 v60, 3456")
    a("v_cndmask_b32 v24, v60, v24, s[56:57]")
    a(f"v_add_u32 v23, {KVB}, v23")
    a(f"v_add_u32 v24, {KVB}, v24")
    a("v_mov_b32 v60, 3360")
    a(f"v_mul_u32_u24 v61, 80, v{VM}")
    a(f"v_cmp_eq_u32 vcc, 0, v{VG}")
    a("v_cndmask_b32 v25, v60, v61, vcc")
    a("v_add_u32 v61, 1680, v61")
    a(f"v_cmp_eq_u32 vcc, 1, v{VG}")
    a("v_cndmask_b32 v26, v60, v61, vcc")
    a(f"v_and_b32 v57, 3, v{VM}")
    a(f"v_lshrrev_b32 v58, 2, v{VM}")
    a("v_lshl_add_u32 v58, v58, 1, v57")
    a("v_subrev_u32 v58, 2, v58")
    a("v_lshrrev_b32 v59, 2, v58")
    a("v_and_b32 v58, 3, v58")
    a("v_add_u32 v58, 16, v58")
    a("v_cmp_gt_u32 vcc, 2, v57")
    a("v_cndmask_b32 v59, v59, v57, vcc")
    a("v_cndmask_b32 v58, v58, 20, vcc")
    a("v_mul_u32_u24 v61, 21, v59")
    a("v_add_u32 v61, v61, v58")
    a("v_mul_u32_u24 v61, 80, v61")
    a(f"v_cmp_eq_u32 vcc, v59, v{VG}")
    a("v_cndmask_b32 v27, v60, v61, vcc")
    for r in (25, 26, 27): a(f"v_add_u32 v{r}, {KVB}, v{r}")
    for i in range(12): a(f"v_accvgpr_write_b32 a{QBC+i}, v{16+i}")

def gen_qb(a):
    stamp(a, 0)
    qkv_setup(a, False)
    ZOFF = EXA + 3360
    for i in range(12): a(f"v_accvgpr_read_b32 v{16+i}, a{QBC+i}")
    a(f"s_lshl_b32 s55, s{SJ}, 4")
    a(f"s_mul_i32 s55, s55, {KVP_STR}")
    a(f"s_add_u32 s55, s55, s{P_KV}")
    a(f"s_mul_i32 s52, s{SRG}, {KVP_STR}")
    a("s_add_u32 s52, s52, s55")
    a(f"s_lshr_b32 s54, s{SL}, 1")
    a("s_lshl_b32 s54, s54, 4")
    a(f"s_add_u32 s54, s54, s{SJ}")
    a("s_lshl_b32 s54, s54, 8")
    a(f"s_add_u32 s54, s54, {FK_OFF}")
    handoff(a, S_FX, 49, 38, 7)
    stamp(a, 1)
    pass1(a, False, False)
    NEG = 180; VOP = 200; KT = 180
    F = []
    for rb in range(2):
        vals = [acc(t, rb) + r for t in range(5) for r in range(4)]
        negs = [NEG + i for i in range(20)]
        C, MXC, MNC = 52, 54, 56
        F.append(f"v_mul_f32 v{C}, {f2u(LOG2E)}, v{RSM[rb]}")
        seq = []
        for op, dst in (("v_max3_f32", MXC), ("v_min3_f32", MNC)):
            s = [f"{op} v{dst}, v{vals[0]}, v{vals[1]}, v{vals[2]}", f"{op} v{dst+1}, v{vals[3]}, v{vals[4]}, v{vals[5]}"]
            for i in range(6, 18, 4):
                s += [f"{op} v{dst}, v{dst}, v{vals[i]}, v{vals[i+1]}", f"{op} v{dst+1}, v{dst+1}, v{vals[i+2]}, v{vals[i+3]}"]
            s += [f"{op} v{dst}, v{dst}, v{vals[18]}, v{vals[19]}", f"{op[:5]}_f32 v{dst}, v{dst}, v{dst+1}", f"v_mul_f32 v{dst}, v{dst}, v{C}"]
            seq.append(s)
        for x, y in zip(*seq): F += [x, y]
        g = []
        for i in range(10):
            x = vals[2 * i]
            g.append(f"v_pk_fma_f32 {vr(NEG+2*i,2)}, {vr(x,2)}, {vr(C,2)}, {vr(MNC,2)} op_sel_hi:[1,0,0] neg_lo:[0,1,0] neg_hi:[0,1,0]")
            g.append(f"v_pk_fma_f32 {vr(x,2)}, {vr(x,2)}, {vr(C,2)}, {vr(MXC,2)} op_sel_hi:[1,0,0] neg_lo:[0,0,1] neg_hi:[0,0,1]")
        F.append(g)
        for lst in (vals, negs): F += [f"v_exp_f32 v{x}, v{x}" for x in lst]
        F.append("v_mov_b32 v62, 0")
        g = []
        for i in range(1, 10):
            for k, lst in enumerate((vals, negs)):
                s = 58 + 2 * k
                g.append(f"v_pk_add_f32 {vr(s,2)}, {vr(lst[0] if i == 1 else s,2)}, {vr(lst[2*i],2)}")
        g += ["v_add_f32 v58, v58, v59", "v_add_f32 v60, v60, v61", "v_rcp_f32 v58, v58", "v_rcp_f32 v60, v60", "s_nop 0"]
        for k, lst in enumerate((vals, negs)):
            g += [f"v_pk_mul_f32 {vr(lst[2*i],2)}, {vr(lst[2*i],2)}, {vr(58+2*k,2)} op_sel_hi:[1,0]" for i in range(10)]
        F.append(g)
        for k, lst in enumerate((vals, negs)):
            F += [f"v_cvt_pk_bf16_f32 v{PH+rb*20+k*10+i}, v{lst[2*i]}, v{lst[2*i]+1}" for i in range(10)]
        F += [f"{MF} {vr(acc(u,rb),4)}, {vr(PH+rb*20+u*4,4)}, {vr(SEL,4)}, 0" for u in range(5)]
    F.append([f"s_mul_i32 s58, s{SW}, 10240", f"s_add_u32 s58, s58, {EXA}", f"v_add_u32 v48, s58, v{VL16}"])
    F.append(f"v_add_u32 v49, {EXA}, v21")
    for rb in range(2):
        for u in range(5): F += pack2(KT + u * 4 + rb * 2, acc(u, rb))
    pass2(a, False, F)
    for rb in range(2):
        for b in range(3):
            for x in mul_n(acc(5 + b, rb), RS4[rb]): a(x)
    for b in range(3):
        for rb in range(2):
            for x in pack2(VOP + b * 4 + rb * 2, acc(5 + b, rb)): a(x)
        if b == 2:
            for r in range(4): a(f"v_cndmask_b32 v{VOP+8+r}, v{VOP+8+r}, v51, s[50:51]")
    for b, base in enumerate((64, 84, 212)):
        for u in range(5): a(f"{MF} {vr(base+u*4,4)}, {vr(KT+u*4,4)}, {vr(VOP+4*b,4)}, 0")
    a("s_mov_b32 exec_hi, 0")
    for u in range(5): a(f"ds_write_b128 v48, {vr(64+u*4,4)} offset:{u*1024}")
    a("s_mov_b32 exec_hi, -1")
    a("s_mov_b32 exec_lo, 0")
    for u in range(5): a(f"ds_write_b128 v48, {vr(84+u*4,4)} offset:{u*1024}")
    a("s_mov_b32 exec_lo, -1")
    for u in range(5): a(f"ds_write_b128 v48, {vr(212+u*4,4)} offset:{5120+u*1024}")
    a("s_waitcnt lgkmcnt(0)")
    a("s_barrier")
    for c, ad in enumerate((49, 20)):
        for w in range(4):
            a(f"ds_read_b128 {vr(64+(c*4+w)*4,4)}, v{ad} offset:{w*10240}")
    for c in range(2):
        a(f"s_waitcnt lgkmcnt({4-4*c})")
        b = 64 + c * 16
        for i in range(2):
            a(f"v_pk_add_f32 {vr(b+2*i,2)}, {vr(b+2*i,2)}, {vr(b+4+2*i,2)}")
            a(f"v_pk_add_f32 {vr(b+8+2*i,2)}, {vr(b+8+2*i,2)}, {vr(b+12+2*i,2)}")
        for i in range(2):
            a(f"v_pk_add_f32 {vr(b+2*i,2)}, {vr(b+2*i,2)}, {vr(b+8+2*i,2)}")
        a(f"buffer_store_dwordx4 {vr(b,4)}, v{21+c}, s[4:7], s52 offen {SC}")
    stamp(a, 3)
    a(f"v_lshlrev_b32 v48, 2, v{VL}")
    a("v_mov_b32 v49, 0")
    handoff(a, 54, 49, 54, 4)
    stamp(a, 8)
    PL = (64, 180)
    for r in range(16):
        if r: a(f"s_add_u32 s55, s55, {KVP_STR}")
        for c in range(2):
            a(f"buffer_load_dwordx4 {vr(PL[c]+r*4,4)}, v{21+c}, s[4:7], s55 offen {SC}", tag=("p", r))
    a("v_min_u32 v48, 92, v48")
    a(f"v_add_u32 v48, {ZOFF}, v48")
    a("ds_write_b32 v48, v62")
    for r in range(2, 16):
        a.wait_vm(("p", r))
        for c in range(2):
            for i in range(2):
                d = PL[c] + (r & 1) * 4 + 2 * i
                a(f"v_pk_add_f32 {vr(d,2)}, {vr(d,2)}, {vr(PL[c]+r*4+2*i,2)}")
    for c in range(2):
        for i in range(2):
            a(f"v_pk_add_f32 {vr(PL[c]+2*i,2)}, {vr(PL[c]+2*i,2)}, {vr(PL[c]+4+2*i,2)}")
        for x in pack2(52 + 2 * c, PL[c]): a(x)
        a(f"ds_write_b64 v{23+c}, {vr(52+2*c,2)}")
    a("s_waitcnt lgkmcnt(0)")
    a("s_barrier")
    AO = 180
    for u in range(5):
        for t in (2, 0, 1):
            a(f"ds_read_b128 {vr(AO+(t*5+u)*4,4)}, v{25+t} offset:{16*u}")
    for u in range(5):
        a(f"s_waitcnt lgkmcnt({12-3*u})")
        for rb in range(2):
            for t in (2, 0, 1):
                d = 64 + (rb * 3 + t) * 4
                a(f"{MF} {vr(d,4)}, {vr(AO+(t*5+u)*4,4)}, {vr(PH+rb*20+u*4,4)}, {'0' if u==0 else vr(d,4)}")
    for rb in range(2):
        d = 64 + rb * 12
        a(f"v_add_f32 v{d+8}, {f2u(1e-6)}, v{d+8}")
        a(f"v_add_f32 v{d+9}, {f2u(1e-6)}, v{d+9}")
        o_finish(a, rb, d, d + 4, d + 8, d + 8, d + 8, d + 9, 104 + rb * 12, 108 + rb * 12)
    stamp_flush(a, 9, 0)

def p_geom(a):
    a(f"s_and_b32 s26, s{SJ}, 1")
    a(f"s_lshr_b32 s63, s{SJ}, 1")
    a(f"s_lshl_b32 s28, s{SRG}, 1")
    a("s_add_u32 s28, s28, s26")
    a("s_lshl_b32 s28, s28, 2")
    a("s_lshr_b32 s35, s63, 1")
    a("s_mul_i32 s35, s35, 5")
    a("s_and_b32 s36, s63, 1")
    a("s_mul_i32 s37, s36, 3")
    a("s_add_u32 s37, s37, s35")
    a("s_add_u32 s35, s35, 2")
    a(f"s_add_u32 s38, s28, s{SW}")
    a("s_mul_i32 s39, s38, 20480")
    a("s_lshl_b32 s40, s37, 10")
    a("s_add_u32 s40, s40, s39")
    a("s_lshl_b32 s41, s35, 10")
    a("s_add_u32 s41, s41, s39")
    a("s_lshl_b32 s42, s36, 9")
    a("s_add_u32 s41, s41, s42")
    a(f"v_lshrrev_b32 v16, 1, v{VG}")
    a("v_lshlrev_b32 v16, 8, v16")
    a(f"v_lshl_add_u32 v16, v{VM}, 4, v16")
    a(f"v_and_b32 v17, 1, v{VG}")
    a("v_lshl_add_u32 v16, v17, 3, v16")

def gen_p(a):
    stamp(a, 0)
    a("s_nop 1")
    p_geom(a)
    a("s_mul_i32 s29, s28, 20480")
    a(f"s_mul_i32 s30, s{SW}, 5120")
    a("s_add_u32 s31, s29, s30")
    a(f"s_add_u32 s31, s31, s{P_O}")
    a("s_add_u32 s32, s31, 4096")
    VO = 20
    for rho in range(4):
        a(f"s_add_u32 s33, s{SW}, {rho}")
        a("s_and_b32 s33, s33, 3")
        a("s_mul_i32 s34, s33, 20480")
        a(f"v_add_u32 v{VO+rho}, s34, v{VL16}")
        a("s_mul_i32 s34, s33, 15360")
        a(f"s_add_u32 s34, s34, {RED+max(rho-1,0)*5120}")
        a(f"v_add_u32 v{24+rho}, s34, v{VL16}")
    a("v_mov_b32 v18, 0")
    XR = 32
    for i in range(10):
        a(f"v_lshlrev_b32 v{XR+2*i}, 16, v{RES+i}")
        a(f"v_and_b32 v{XR+2*i+1}, 0xffff0000, v{RES+i}")
    a(f"s_add_u32 s44, s40, s{P_X}")
    a(f"s_add_u32 s44, s44, {XF_SZ}")
    a(f"s_add_u32 s45, s41, s{P_X}")
    a(f"s_add_u32 s45, s45, {XF_SZ}")
    a("s_lshl_b32 s46, s38, 10")
    a("s_lshl_b32 s47, s63, 3")
    a("s_add_u32 s46, s46, s47")
    a(f"s_add_u32 s46, s46, s{P_ST}")
    a(f"s_add_u32 s46, s46, {ST_SZ}")
    a(f"s_add_u32 s{S_FX}, s{S_FO}, {FX_OFF-FO_OFF+4096}")
    a(f"v_lshlrev_b32 v17, 6, v{VM}")
    a(f"v_mov_b32 v19, {OOB}")
    a(f"v_cmp_eq_u32 vcc, 0, v{VG}")
    a("v_cndmask_b32 v17, v19, v17, vcc")
    handoff(a, S_FO, 18, S_FO, 7)
    stamp(a, 1)
    WFp = lambda n, b: (n * 5 + b) * 4
    OFp = lambda n, rho: 100 + (n * 4 + rho) * 4
    for n in range(5):
        for rho in (1, 2, 3, 0):
            if n < 4: a(f"buffer_load_dwordx4 {ar(OFp(n,rho),4)}, v{VO+rho}, s[4:7], s31 offen offset:{n*1024} {SC}", tag=("n", n, rho))
            else: a(f"buffer_load_dwordx4 {ar(OFp(n,rho),4)}, v{VO+rho}, s[4:7], s32 offen {SC}", tag=("n", n, rho))
    A_ = lambda rho, b: 64 + (rho * 5 + b) * 4
    b2 = dma_batch(EXA, 9, 27, 90, 9216)
    for n in range(5):
        for rho in (1, 2, 3, 0):
            a.wait_vm(("n", n, rho))
            if n == 0 and rho == 1: stamp(a, 2)
            for b in range(5):
                a(f"{MF} {vr(A_(rho,b),4)}, {ar(WFp(n,b),4)}, {ar(OFp(n,rho),4)}, {'0' if n==0 else vr(A_(rho,b),4)}")
                if n == 4 and rho in (2, 3, 0):
                    pr = {2: 1, 3: 2, 0: 3}[rho]
                    a(f"ds_write_b128 v{24+pr}, {vr(A_(pr,b),4)} offset:{b*1024}")
            if n >= 1 and b2: a.emit_item(b2.pop(0))
    stamp(a, 3)
    a("s_waitcnt lgkmcnt(0)")
    a("s_barrier")
    stamp(a, 4)
    T = 144
    for s in range(3):
        for b in range(5):
            a(f"ds_read_b128 {vr(T+(s*5+b)*4,4)}, v24 offset:{s*5120+b*1024}")
    for s in range(3):
        a(f"s_waitcnt lgkmcnt({10-5*s})")
        for i in range(10):
            a(f"v_pk_add_f32 {vr(64+2*i,2)}, {vr(64+2*i,2)}, {vr(T+s*20+2*i,2)}")
    b3 = b3_batch(27)
    E = []
    Y = 84
    E += [f"v_cvt_pk_bf16_f32 v{Y+i}, v{64+2*i}, v{65+2*i}" for i in range(10)]
    for i in range(10): E += [f"v_lshlrev_b32 v{64+2*i}, 16, v{Y+i}", f"v_and_b32 v{65+2*i}, 0xffff0000, v{Y+i}"]
    E += [f"v_pk_add_f32 {vr(64+2*i,2)}, {vr(64+2*i,2)}, {vr(XR+2*i,2)}" for i in range(10)]
    E += [f"v_cvt_pk_bf16_f32 v{RES+i}, v{64+2*i}, v{65+2*i}" for i in range(10)]
    for x in E: a(x)
    a(f"s_cmp_eq_u32 s{SL}, 3")
    a("s_cbranch_scc1 p_final")
    a(f"buffer_store_dwordx4 {vr(RES,4)}, v{VL16}, s[4:7], s44 offen {SC}")
    a(f"buffer_store_dwordx4 {vr(RES+4,4)}, v{VL16}, s[4:7], s44 offen offset:1024 {SC}")
    a(f"buffer_store_dwordx2 {vr(RES+8,2)}, v16, s[4:7], s45 offen {SC}")
    E = []
    for i in range(10): E += [f"v_lshlrev_b32 v{64+2*i}, 16, v{RES+i}", f"v_and_b32 v{65+2*i}, 0xffff0000, v{RES+i}"]
    E += ["v_pk_add_f32 v[108:109], v[64:65], v[66:67]", "v_pk_add_f32 v[110:111], v[68:69], v[70:71]"]
    E += [f"v_pk_add_f32 {vr(108+(i&1)*2,2)}, {vr(108+(i&1)*2,2)}, {vr(64+2*i,2)}" for i in range(4, 10)]
    E += ["v_pk_add_f32 v[108:109], v[108:109], v[110:111]", "v_add_f32 v108, v108, v109"]
    E += xreduce_l(108, 109, "v_add_f32")
    E += [f"v_mul_f32 v110, {f2u(-1.0/80)}, v108"]
    E += [f"v_pk_add_f32 {vr(64+2*i,2)}, {vr(64+2*i,2)}, v[110:111] op_sel_hi:[1,0]" for i in range(10)]
    E += ["v_pk_mul_f32 v[112:113], v[64:65], v[64:65]", "v_pk_mul_f32 v[114:115], v[66:67], v[66:67]"]
    E += [f"v_pk_fma_f32 {vr(112+(i&1)*2,2)}, {vr(64+2*i,2)}, {vr(64+2*i,2)}, {vr(112+(i&1)*2,2)}" for i in range(2, 10)]
    E += ["v_pk_add_f32 v[112:113], v[112:113], v[114:115]", "v_add_f32 v109, v112, v113"]
    E += xreduce_l(109, 112, "v_add_f32")
    for i, x in enumerate(E):
        a(x)
        if B3POS == 0 and i % 4 == 3 and b3: a.emit_item(b3.pop(0))
    a(f"buffer_store_dwordx2 v[108:109], v17, s[4:7], s46 offen {SC}")
    for x in b3: a.emit_item(x)
    stamp_flush(a, 7 if False else 5, 1)
    a(f"s_add_u32 s{SL}, s{SL}, 1")
    a(f"s_add_u32 s{P_X}, s{P_X}, {XF_SZ}")
    a(f"s_add_u32 s{P_ST}, s{P_ST}, {ST_SZ}")
    a(f"s_add_u32 s{P_O}, s{P_O}, {XF_SZ}")
    a(f"s_mov_b32 s33, s{P_WQ}")
    a(f"s_mov_b32 s{P_WQ}, s{P_WN}")
    a(f"s_mov_b32 s{P_WN}, s33")
    a(f"s_xor_b32 s{P_WO}, s{P_WO}, {WO_OFF ^ (WO_OFF + WO_L)}")
    a(f"s_cmp_eq_u32 s{SL}, 2")
    a("s_cbranch_scc1 qa_steady")
    a(f"s_lshr_b32 s33, s{SL}, 1")
    a(f"s_mul_i32 s33, s33, {KVP_SZ}")
    a(f"s_add_u32 s{P_KV}, s33, {KVP_OFF}")
    a("s_branch qb_body")
    a.label("p_final")
    a(f"v_mul_u32_u24 v17, 1280, v{VM}")
    a(f"v_lshl_add_u32 v18, v{VG}, 4, v17")
    a(f"v_lshl_add_u32 v19, v{VG}, 3, v17")
    a("s_lshl_b32 s42, s37, 6")
    a("s_add_u32 s42, s42, s39")
    a("s_lshl_b32 s43, s35, 6")
    a("s_add_u32 s43, s43, s39")
    a("s_lshl_b32 s36, s36, 5")
    a("s_add_u32 s43, s43, s36")
    a(f"buffer_store_dwordx4 {vr(RES,4)}, v18, s[8:11], s42 offen")
    a(f"buffer_store_dwordx4 {vr(RES+4,4)}, v18, s[8:11], s42 offen offset:64")
    a(f"buffer_store_dwordx2 {vr(RES+8,2)}, v19, s[8:11], s43 offen")
    if PROF: a("s_waitcnt vmcnt(0)")
    stamp_flush(a, 5, 1)
    a("s_waitcnt vmcnt(0)")
    a("s_endpgm")

B3POS = 0
def build():
    a = Asm()
    a.raw('.amdgcn_target "amdgcn-amd-amdhsa--gfx950"\n.text')
    gen_prep(a)
    kernel_head(a, "main_kernel")
    common_prologue(a, 256, "main_exit", aux_slot=7, aux_bytes=2621440)
    for k, v in {SL: 0, P_X: XF_OFF, P_ST: ST_OFF, P_O: OF_OFF, P_WQ: WQ_OFF, P_WN: WQ_OFF + 16 * WQ_TILE, P_WO: WO_OFF, P_KV: KVP_OFF}.items():
        a(f"s_mov_b32 s{k}, {v}")
    p_geom(a)
    a(f"s_add_u32 s44, s40, s{P_X}")
    a(f"s_add_u32 s45, s41, s{P_X}")
    a(f"buffer_load_dwordx4 {vr(RES,4)}, v{VL16}, s[4:7], s44 offen")
    a(f"buffer_load_dwordx4 {vr(RES+4,4)}, v{VL16}, s[4:7], s44 offen offset:1024")
    a(f"buffer_load_dwordx2 {vr(RES+8,2)}, v16, s[4:7], s45 offen")
    gen_qa(a, True)
    a("s_branch p_body")
    a.raw(".p2align 6"); a.label("qa_steady"); a.hist = []; a.vm_reset(); a.lg = []
    gen_qa(a, False)
    a("s_branch p_body")
    a.raw(".p2align 6"); a.label("qb_body"); a.hist = []; a.vm_reset(); a.lg = []
    gen_qb(a)
    a.label("p_body"); a.vm_reset(); a.lg = []
    gen_p(a)
    a.label("main_exit")
    a("s_endpgm")
    head = f"; @launch kernel=prep_kernel grid=(254,1,1) block=(256,1,1) lds=12288\n; @launch kernel=main_kernel grid=(256,1,1) block=(256,1,1) lds={LDS_Q}\n"
    tail = '.section .rodata,"a"\n' + descriptor("prep_kernel", 256, 256) + descriptor("main_kernel")
    print("nops inserted:", a.nnop, file=sys.stderr)
    return head + a.text() + tail

if __name__ == "__main__":
    out = sys.argv[1] if len(sys.argv) > 1 else f"cdna_kernels/{NAME}.s"
    if "--prof" in sys.argv: PROF = True
    for x in sys.argv:
        if x.startswith("--map="): MAP = int(x[6:])
        if x.startswith("--la="): LA = int(x[5:])
        if x.startswith("--slots="): SLOTS = float(x[8:])
        if x.startswith("--b3="): B3POS = int(x[5:])
        if x.startswith("--dbg="): DBG = set(x[6:].split(","))
    s = build()
    open(out, "w").write(s)
    print("wrote", out, len(s), "bytes")
```
